```python
import torch

def _softmax(x, axis=-1):
    return torch.softmax(x, dim=axis)
def _gelu(x):
    return torch.nn.functional.gelu(x, approximate="tanh")
def _silu(x):
    return torch.nn.functional.silu(x)
def _sigmoid(x):
    return torch.sigmoid(x)
def _layernorm(x, axis=-1, eps=1e-5):
    m = x.mean(dim=axis, keepdim=True)
    v = x.var(dim=axis, keepdim=True, unbiased=False)
    return (x - m) / torch.sqrt(v + eps)
def _scatter_add(tgt, idx, src, axis=0):
    return tgt.clone().index_add_(axis, idx, src)
def _segment_sum(src, seg, n):
    out = torch.zeros((n,) + src.shape[1:], dtype=src.dtype)
    return out.index_add_(0, seg, src)
def _pad(x, pw):
    flat = tuple(v for pair in reversed(pw) for v in pair)
    return torch.nn.functional.pad(x, flat)

kernel_name = 'parallel_sum__spectral_gfnet__glu_gated_bilinear__prompt'

def setup_inputs():

    _w = (lambda a: (lambda t: t.to(torch.bfloat16) if t.is_floating_point() else t)(torch.as_tensor(a)))
    def _A_setup():
        B, S, D = 1, 2048, 640
        Df = D // 2 + 1
        return {
            "x": _w((lambda *s: torch.randn(*s, dtype=torch.bfloat16) * 0.05)(B, S, D)),
            "w_r": _w((lambda *s: torch.randn(*s, dtype=torch.bfloat16) * 0.4)(S, Df) * 0.02),
            "w_i": _w((lambda *s: torch.randn(*s, dtype=torch.bfloat16) * 0.4)(S, Df) * 0.02),
        }
    _A_in = _A_setup()

    def _B_setup():
        B, S, D, F = 1, 2048, 640, 1536
        return {
            "x": _w((lambda *s: torch.randn(*s, dtype=torch.bfloat16) * 0.05)(B, S, D)),
            "w_gate": _w((lambda *s: torch.randn(*s, dtype=torch.bfloat16) * 0.2)(D, F) * (D ** -0.5)),
            "w_up": _w((lambda *s: torch.randn(*s, dtype=torch.bfloat16) * 0.2)(D, F) * (D ** -0.5)),
            "w_down": _w((lambda *s: torch.randn(*s, dtype=torch.bfloat16) * 0.2)(F, D) * (F ** -0.5)),
        }
    _B_in = _B_setup()

    return {
        "A_x": _A_in["x"],
        "A_w_r": _A_in["w_r"],
        "A_w_i": _A_in["w_i"],
        "B_x": _B_in["x"],
        "B_w_gate": _B_in["w_gate"],
        "B_w_up": _B_in["w_up"],
        "B_w_down": _B_in["w_down"],
    }

def reference(A_x, A_w_r, A_w_i, B_x, B_w_gate, B_w_up, B_w_down):
    def _A_ref(x, w_r, w_i):
        B, S, D = x.shape
        X = (lambda x, axes=(-2,-1): torch.fft.rfft2(x.float(), dim=axes))(x, axes=(-2, -1))
        W = w_r + 1j * w_i
        X = X * W
        y = (lambda x, s, axes=(-2,-1): torch.fft.irfft2(x, s=s, dim=axes).to(torch.bfloat16))(X, (S, D), axes=(-2, -1))
        return y

    def _B_ref(x, w_gate, w_up, w_down):
        g = torch.einsum("bsd,df->bsf", x, w_gate)
        u = torch.einsum("bsd,df->bsf", x, w_up)
        h = g * u
        return torch.einsum("bsf,fd->bsd", h, w_down)

    x = A_x
    xn = _layernorm(x, axis=-1)
    return x + _A_ref(xn, A_w_r, A_w_i) + _B_ref(xn, B_w_gate, B_w_up, B_w_down)
```

```python
import re

_REG = re.compile(r'^(-|\|)?(abs\()?([vsa])(?:(\d+)|\[(\d+):(\d+)\])\)?\|?$')
TRANS = ('v_exp_f32', 'v_log_f32', 'v_rcp_f32', 'v_rsq_f32', 'v_sqrt_f32', 'v_sin_f32', 'v_cos_f32',
         'v_rcp_iflag_f32')

def regs_of(op):
    op = op.strip()
    if op in ('vcc', 'vcc_lo', 'vcc_hi'):
        return {('s', 106), ('s', 107)}
    if op in ('exec',):
        return {('s', 126), ('s', 127)}
    if op == 'm0':
        return {('s', 124)}
    m = _REG.match(op)
    if not m:
        return set()
    k = m.group(3)
    if m.group(4) is not None:
        return {(k, int(m.group(4)))}
    return {(k, i) for i in range(int(m.group(5)), int(m.group(6)) + 1)}

class Ins:
    __slots__ = ('text', 'mn', 'cls', 'wr', 'rd', 'A', 'B', 'C', 'passes', 'dpp', 'states', 'wide_store', 'lds_dma')

def parse(text):
    t = text.split(';')[0].strip()
    ins = Ins()
    ins.text = text
    parts = t.split(None, 1)
    mn = parts[0]
    ins.mn = mn
    rest = parts[1] if len(parts) > 1 else ''
    ops = []
    cur = ''
    depth = 0
    for ch in rest:
        if ch in '[(':
            depth += 1
        if ch in '])':
            depth -= 1
        if ch == ',' and depth == 0:
            ops.append(cur.strip()); cur = ''
        else:
            cur += ch
    if cur.strip():
        ops.append(cur.strip())
    mods = ''
    if ops:
        last = ops[-1].split(None, 1)
        ops[-1] = last[0]
        mods = last[1] if len(last) > 1 else ''
    ins.wr = set(); ins.rd = set(); ins.A = ins.B = ins.C = set()
    ins.passes = 0; ins.dpp = False; ins.states = 1; ins.wide_store = set(); ins.lds_dma = False
    R = [regs_of(o) for o in ops]
    if mn == 's_nop':
        ins.cls = 'nop'; ins.states = int(ops[0], 0) + 1
    elif mn.startswith('v_mfma'):
        ins.cls = 'mfma'
        ins.wr = R[0]; ins.A = R[1]; ins.B = R[2]; ins.C = R[3]
        ins.rd = R[1] | R[2] | R[3]
        ins.passes = 8 if '32x32x16' in mn else 4
        assert '32x32x16' in mn or '16x16x32' in mn, mn
    elif mn.startswith('v_'):
        ins.cls = 'valu'
        base = mn.replace('_e32', '').replace('_e64', '').replace('_dpp', '').replace('_sdwa', '')
        if base in TRANS:
            ins.cls = 'trans'
        if base.startswith('v_dot'):
            ins.cls = 'dot'
        if 'dpp' in mn or 'row_' in mods or 'quad_perm' in mods:
            ins.dpp = True
        if base.startswith('v_permlane'):
            ins.wr = R[0] | R[1]; ins.rd = R[0] | R[1]
        elif base in ('v_add_co_u32', 'v_sub_co_u32', 'v_addc_co_u32', 'v_subb_co_u32', 'v_mad_u64_u32'):
            ins.wr = R[0] | R[1]
            for r in R[2:]: ins.rd |= r
        else:
            ins.wr = R[0]
            for r in R[1:]: ins.rd |= r
            if base in ('v_fmac_f32', 'v_dot2c_f32_bf16', 'v_pk_fmac_f16') or ins.dpp or 'UNUSED_PRESERVE' in mods:
                ins.rd |= R[0]
    elif mn.startswith('ds_'):
        ins.cls = 'ds'
        if mn.startswith('ds_read') or 'rtn' in mn or 'permute' in mn or 'swizzle' in mn:
            ins.wr = R[0]
            for r in R[1:]: ins.rd |= r
            if 'd16' in mn: ins.rd |= R[0]
        else:
            for r in R: ins.rd |= r
    elif mn.startswith('buffer_') or mn.startswith('global_'):
        ins.cls = 'vmem'
        islds = bool(re.search(r'\blds\b', mods)) or '_lds_' in mn
        ins.lds_dma = islds
        if mn in ('buffer_inv', 'buffer_wbl2'):
            pass
        elif 'load' in mn and not islds:
            ins.wr = R[0]
            for r in R[1:]: ins.rd |= r
        elif 'atomic' in mn and 'sc0' in mods:
            ins.wr = R[0]
            for r in R: ins.rd |= r
        else:
            for r in R: ins.rd |= r
            if 'store' in mn and ('x3' in mn or 'x4' in mn):
                ins.wide_store = R[0] if mn.startswith('buffer') else R[1]
        if islds:
            ins.rd |= {('s', 124)}
    elif mn.startswith('s_'):
        ins.cls = 'salu'
        if mn.startswith(('s_cmp', 's_cbranch', 's_branch', 's_waitcnt', 's_barrier', 's_endpgm', 's_sleep', 's_setprio', 's_bitcmp')):
            for r in R: ins.rd |= r
        else:
            if R:
                ins.wr = R[0]
                for r in R[1:]: ins.rd |= r
            if 'saveexec' in mn:
                ins.wr |= regs_of('exec')
    else:
        raise ValueError('unknown instruction ' + text)
    return ins

VALUS = ('valu', 'trans', 'dot')

def need(p, c):
    n = 0
    pv = p.cls in VALUS
    cv = c.cls in VALUS
    pw_v = {r for r in p.wr if r[0] != 's'}
    pw_s = {r for r in p.wr if r[0] == 's'}
    if pv:
        if c.cls == 'mfma' and pw_v & c.rd:
            n = max(n, 3 if p.cls == 'dot' else 2)
        if cv and c.dpp and pw_v & c.rd: n = max(n, 2)
        if cv and c.mn.startswith('v_permlane') and pw_v & c.rd: n = max(n, 2)
        if cv and c.mn.startswith(('v_readlane', 'v_readfirstlane')) and pw_v & c.rd: n = max(n, 1)
        if p.cls == 'trans' and (cv or c.cls in ('ds', 'vmem')) and c.cls != 'trans' and pw_v & c.rd: n = max(n, 1)
        if p.cls == 'trans' and c.cls == 'trans' and pw_v & c.rd: n = max(n, 1)
        if p.cls == 'dot' and (pw_v & (c.rd | c.wr)):
            if not (c.mn == p.mn and (pw_v & c.wr) and not (pw_v & (c.rd - c.wr))):
                n = max(n, 3)
        if pw_s:
            if cv and pw_s & c.rd: n = max(n, 4 if c.mn.startswith(('v_readlane', 'v_writelane')) else 2)
            if c.cls == 'vmem' and pw_s & c.rd: n = max(n, 5)
            if c.cls == 'salu' and pw_s & c.rd: n = max(n, 2)
            if regs_of('exec') & pw_s and (c.cls == 'mfma' or c.dpp): n = max(n, 5)
        if 'sdwa' in p.mn and cv and pw_v & c.rd: n = max(n, 1)
    if p.cls == 'mfma':
        big = 12 if p.passes == 8 else 8
        if (cv or c.cls in ('ds', 'vmem')) and p.wr & (c.rd | c.wr): n = max(n, big)
        if c.cls == 'mfma':
            if p.wr & (c.A | c.B): n = max(n, big)
            if p.wr & c.C:
                if not (p.wr == c.C and p.passes == c.passes):
                    n = max(n, 10 if p.passes == 8 else 6)
            elif p.wr & c.wr:
                n = max(n, 0)
        if cv and p.C & c.wr: n = max(n, 7 if p.passes == 8 else 3)
    if p.cls == 'salu' and ('s', 124) in p.wr and c.lds_dma: n = max(n, 1)
    if p.wide_store and (p.wide_store & c.wr): n = max(n, 2)
    return n

class Asm:
    def __init__(self):
        self.out = []
        self.hist = []
        self.nops = 0
    def raw(self, s):
        self.out.append(s)
    def label(self, name):
        self.out.append(name + ':')
    def fence(self):
        self('s_nop 15')
    def __call__(self, text):
        for line in text.split('\n'):
            line = line.strip()
            if not line or line.startswith(';'):
                continue
            ins = parse(line)
            dist = 0
            pad = 0
            for p in reversed(self.hist):
                n = need(p, ins)
                if n > dist:
                    pad = max(pad, n - dist)
                dist += p.states
                if dist >= 20: break
            while pad > 0:
                k = min(pad, 16)
                nop = parse('s_nop %d' % (k - 1))
                self.out.append('    s_nop %d' % (k - 1))
                self.hist.append(nop)
                self.nops += 1
                pad -= k
            self.out.append('    ' + line)
            self.hist.append(ins)
            if len(self.hist) > 40:
                self.hist = self.hist[-24:]
    def text(self):
        return '\n'.join(self.out) + '\n'

def v(i, n=1):
    return 'v%d' % i if n == 1 else 'v[%d:%d]' % (i, i + n - 1)
def s(i, n=1):
    return 's%d' % i if n == 1 else 's[%d:%d]' % (i, i + n - 1)
import struct
def f32(x):
    return '0x%08x' % struct.unpack('<I', struct.pack('<f', x))[0]

class VAlloc:
    def __init__(self, start=1, limit=256):
        self.p = start; self.limit = limit; self.hi = start
    def __call__(self, n=1, align=None):
        if align is None:
            align = 1 if n == 1 else (2 if n == 2 else 4)
        self.p = (self.p + align - 1) // align * align
        r = self.p
        self.p += n
        self.hi = max(self.hi, self.p)
        assert self.p <= self.limit, 'out of VGPRs %d' % self.p
        return r
    def mark(self): return self.p
    def release(self, m): self.p = m
```

```python
from asm import *
from stamp import Stamps
from k1g import srd, bf16r, ln_scalars, S_X, S_WR, S_WI, S_WS, S_DBG, S_WD, Y_OFF, U_OFF, KK
import os
X = os.environ.get('X', '')
N2S = 8 * KK * 16
QS = KK * 16
YBYTES = 64 * N2S
GUARD = 64

def allreduce16(a, r):
    for m in ('quad_perm:[1,0,3,2]', 'quad_perm:[2,3,0,1]', 'row_half_mirror', 'row_mirror'):
        a(f'v_add_f32_dpp v{r}, v{r}, v{r} {m} row_mask:0xf bank_mask:0xf')

def cheb(a, dst, cur, prev, M):
    a(f'v_pk_fma_f32 {v(dst,2)}, {v(cur,2)}, {v(M,2)}, {v(prev,2)} op_sel_hi:[1,0,1] neg_lo:[0,0,1] neg_hi:[0,0,1]')
def cheb_hi(a, dst, cur, prev, M):
    a(f'v_pk_fma_f32 {v(dst,2)}, {v(cur,2)}, {v(M,2)}, {v(prev,2)} op_sel:[0,1,0] op_sel_hi:[1,1,1] neg_lo:[0,0,1] neg_hi:[0,0,1]')

def gen_a(a, merged):
    V = VAlloc(1)
    T = Stamps(a)
    T.mark()
    SX, SY = 36, 40
    sN2, sPAR, sT0, sCNT = 52, 53, 54, 55
    RS = 336; SEQ = 32 * RS; SPEC = 4 * SEQ
    sc = ' sc1' if merged else ''
    srd(a, SX, S_X, 2048 * 1280)
    srd(a, SY, S_WS, YBYTES, Y_OFF)
    a(f'''
    s_and_b32 s5, s2, 7
    s_lshr_b32 s6, s2, 3
    s_lshl_b32 s5, s5, 3
    s_add_u32 s{sN2}, s5, s6
    s_lshr_b32 s{sPAR}, s4, 2
    ''')
    lane = V(); t0 = V(); t1 = V(); t2 = V(); vp = V(); vi = V(); vg = V(); vrow = V()
    raw = V(24, 4)
    ra, re_, rb, rc = raw, raw + 6, raw + 12, raw + 18
    a(f'''
    v_and_b32 v{lane}, 63, v0
    v_and_b32 v{vp}, 15, v0
    v_lshrrev_b32 v{vrow}, 4, v0
    v_lshlrev_b32 v{t0}, 6, v{vrow}
    v_add_u32 v{t0}, s{sN2}, v{t0}
    v_mul_u32_u24 v{t0}, 1280, v{t0}
    v_mul_u32_u24 v{t1}, 20, v{vp}
    v_add_u32 v{t2}, v{t0}, v{t1}
    v_sub_u32 v{t1}, v{t0}, v{t1}
    v_add_u32 v{t1}, 620, v{t1}
    buffer_load_dwordx4 {v(ra,4)}, v{t2}, s[{SX}:{SX+3}], 0 offen
    buffer_load_dword v{ra+4}, v{t2}, s[{SX}:{SX+3}], 0 offen offset:16
    buffer_load_dwordx4 {v(re_,4)}, v{t2}, s[{SX}:{SX+3}], 0 offen offset:640
    buffer_load_dword v{re_+4}, v{t2}, s[{SX}:{SX+3}], 0 offen offset:656
    buffer_load_dwordx4 {v(rb,4)}, v{t1}, s[{SX}:{SX+3}], 0 offen offset:640
    buffer_load_dwordx2 {v(rb+4,2)}, v{t1}, s[{SX}:{SX+3}], 0 offen offset:656
    buffer_load_dwordx4 {v(rc,4)}, v{t1}, s[{SX}:{SX+3}], 0 offen
    buffer_load_dwordx2 {v(rc+4,2)}, v{t1}, s[{SX}:{SX+3}], 0 offen offset:16
    v_lshrrev_b32 v{vg}, 4, v{lane}
    v_mov_b32 v{vi}, v{vp}
    ''')
    a(f'''
    s_lshl_b32 s5, s4, 2
    s_mov_b32 s6, 0x74208630
    s_lshr_b32 s6, s6, s5
    s_and_b32 s{sT0}, s6, 15
    s_lshr_b32 s6, 0xC3, s4
    s_and_b32 s{sCNT}, s6, 1
    ''')
    Bc = [[V(4) for _ in range(5)] for _ in range(3)]
    Bs = [[V(4) for _ in range(5)] for _ in range(3)]
    Are = [[V(4) for _ in range(2)] for _ in range(2)]
    Aim = [[V(4) for _ in range(2)] for _ in range(2)]
    mk = V.mark()
    R0 = V(20, 2); R1 = V(20, 2); MM = V(2); kf = V(); gd = V(); ang = V(2)
    u0 = V(); u1 = V()
    a(f'''
    v_lshlrev_b32 v{t0}, 8, v{vg}
    v_add_u32 v{t0}, s{sN2}, v{t0}
    v_cvt_f32_u32 v{t0}, v{t0}
    v_mul_f32 v{t0}, {f32(1/64)}, v{t0}
    ''')
    for kt in range(2):
        a(f'v_add_u32 v{t1}, {16*kt}, v{vi}')
        a(f'v_cvt_f32_u32 v{t1}, v{t1}')
        a(f'v_mul_f32 v{u1}, {f32(1/32)}, v{t1}')
        a(f'v_mul_f32 v{u0}, v{u1}, v{t0}')
        for mt in range(2):
            for r in range(4):
                p = R0 + 2 * r
                a(f'v_fmamk_f32 v{ang + r % 2}, v{u1}, {f32(16*mt + r)}, v{u0}')
                a(f'v_cos_f32 v{p}, v{ang + r % 2}')
                a(f'v_sin_f32 v{p+1}, v{ang + r % 2}')
            for r in range(4):
                p = R0 + 2 * r
                a(f'v_cvt_pk_bf16_f32 v{Are[kt][mt]+r}, v{p}, -v{p+1}')
                a(f'v_cvt_pk_bf16_f32 v{Aim[kt][mt]+r}, -v{p+1}, -v{p}')
    a(f'v_mul_u32_u24 v{gd}, 10, v{vg}')
    a(f'v_cvt_f32_u32 v{gd}, v{gd}')
    def bgen(z):
        a(f'''
        s_add_u32 s5, s{sT0}, {z}
        s_lshl_b32 s5, s5, 5
        s_add_u32 s5, s5, s{sPAR}
        v_lshl_add_u32 v{kf}, v{vi}, 1, s5
        v_cvt_f32_u32 v{kf}, v{kf}
        v_mul_f32 v{kf}, {f32(1/640)}, v{kf}
        v_cos_f32 v{MM}, v{kf}
        v_mul_f32 v{ang}, {f32(40.0)}, v{kf}
        v_cos_f32 v{MM+1}, v{ang}
        v_pk_add_f32 {v(MM,2)}, {v(MM,2)}, {v(MM,2)}
        ''')
        rows = [R0, R1]
        for ks in range(2):
            R = rows[ks]
            for e in range(2):
                a(f'v_add_f32 v{ang+e}, {f32(40.0*ks + e)}, v{gd}')
                a(f'v_mul_f32 v{ang+e}, v{ang+e}, v{kf}')
                a(f'v_cos_f32 v{R+2*e}, v{ang+e}')
                a(f'v_sin_f32 v{R+2*e+1}, v{ang+e}')
        for e in range(2, 10):
            for ks in range(2):
                R = rows[ks]
                cheb(a, R + 2 * e, R + 2 * e - 2, R + 2 * e - 4, MM)
        for ks in range(4):
            R = rows[ks % 2]
            if ks >= 2:
                for e in range(10):
                    cheb_hi(a, R + 2 * e, rows[(ks + 1) % 2] + 2 * e, R + 2 * e, MM)
            for e in range(0, 10, 2):
                dc = Bc[z][ks] + e // 2 if e < 8 else Bc[z][4] + ks
                ds = Bs[z][ks] + e // 2 if e < 8 else Bs[z][4] + ks
                a(f'v_cvt_pk_bf16_f32 v{dc}, v{R+2*e}, v{R+2*e+2}')
                a(f'v_cvt_pk_bf16_f32 v{ds}, v{R+2*e+1}, v{R+2*e+3}')
    bgen(0); bgen(1)
    a(f's_cmp_eq_u32 s{sCNT}, 0')
    a('s_cbranch_scc1 A_SKIP_B2')
    bgen(2)
    a.label('A_SKIP_B2')
    a('s_nop 1')
    T.mark()
    V.release(mk)
    xa = V(10, 2); xe = V(10, 2); xb = V(10, 2); xc = V(10, 2); xs = V(2)
    acc = V(2); mu = V(2); sMASK = 56
    a(f's_mov_b32 s{sMASK}, 0xffff0000')
    a('s_waitcnt vmcnt(0)')
    T.mark()
    def unp(dst, r, half):
        if half == 0: a(f'v_lshlrev_b32 v{dst}, 16, v{r}')
        else: a(f'v_and_b32 v{dst}, s{sMASK}, v{r}')
    for i in range(10):
        unp(xa + i, ra + i // 2, i % 2)
        unp(xe + i, re_ + i // 2, i % 2)
        t = 10 - i
        unp(xb + i, rb + t // 2, t % 2)
        unp(xc + i, rc + t // 2, t % 2)
    unp(xs, rb, 0); unp(xs + 1, rc, 0)
    a(f'v_cmp_eq_u32 s[58:59], 15, v{vp}')
    a(f'v_cmp_ne_u32 s[60:61], 0, v{vp}')
    def mask():
        a(f'v_cndmask_b32 v{xs}, 0, v{xs}, s[58:59]')
        a(f'v_cndmask_b32 v{xs+1}, 0, v{xs+1}, s[58:59]')
        a(f'v_cndmask_b32 v{xb}, 0, v{xb}, s[60:61]')
        a(f'v_cndmask_b32 v{xc}, 0, v{xc}, s[60:61]')
    mask()
    prs = [xs] + [b + i for b in (xa, xe, xb, xc) for i in range(0, 10, 2)]
    a(f'v_pk_add_f32 {v(acc,2)}, {v(prs[0],2)}, {v(prs[1],2)}')
    a(f'v_pk_add_f32 {v(mu,2)}, {v(prs[2],2)}, {v(prs[3],2)}')
    for n, p in enumerate(prs[4:]):
        d = acc if n % 2 == 0 else mu
        a(f'v_pk_add_f32 {v(d,2)}, {v(d,2)}, {v(p,2)}')
    a(f'v_pk_add_f32 {v(acc,2)}, {v(acc,2)}, {v(mu,2)}')
    a(f'v_add_f32 v{acc}, v{acc}, v{acc+1}')
    allreduce16(a, acc)
    a(f'v_mul_f32 v{mu}, {f32(1/640)}, v{acc}')
    for p in prs:
        a(f'v_pk_add_f32 {v(p,2)}, {v(p,2)}, {v(mu,2)} op_sel_hi:[1,0] neg_lo:[0,1] neg_hi:[0,1]')
    mask()
    ac2 = V(2)
    a(f'v_pk_mul_f32 {v(acc,2)}, {v(prs[0],2)}, {v(prs[0],2)}')
    a(f'v_pk_mul_f32 {v(ac2,2)}, {v(prs[1],2)}, {v(prs[1],2)}')
    for n, p in enumerate(prs[2:]):
        d = acc if n % 2 == 0 else ac2
        a(f'v_pk_fma_f32 {v(d,2)}, {v(p,2)}, {v(p,2)}, {v(d,2)}')
    a(f'v_pk_add_f32 {v(acc,2)}, {v(acc,2)}, {v(ac2,2)}')
    a(f'v_add_f32 v{acc}, v{acc}, v{acc+1}')
    allreduce16(a, acc)
    a(f'v_mul_f32 v{acc}, {f32(1/640)}, v{acc}')
    rr = V(2)
    ln_scalars(a, mu, acc, mu + 1, rr, t0)
    a(f'v_mul_f32 v{rr}, {f32(2.0/(2048*640))}, v{rr}')
    a(f'v_sub_f32 v{mu}, v{mu}, v{mu+1}')
    a(f'v_mul_f32 v{mu}, v{mu}, v{rr}')
    a(f'v_mul_f32 v{rr+1}, 4.0, v{mu}')
    tA = V(2); tB = V(2)
    NEG = 'neg_lo:[0,1] neg_hi:[0,1]'
    out = [raw, raw + 6, raw + 12, raw + 18]
    for i in range(0, 10, 2):
        A_, B_, C_, E_ = v(xa+i,2), v(xb+i,2), v(xc+i,2), v(xe+i,2)
        a(f'v_pk_add_f32 {v(tA,2)}, {A_}, {B_}')
        a(f'v_pk_add_f32 {A_}, {A_}, {B_} {NEG}')
        a(f'v_pk_add_f32 {v(tB,2)}, {C_}, {E_}')
        a(f'v_pk_add_f32 {E_}, {E_}, {C_} {NEG}')
        a(f'v_pk_add_f32 {B_}, {v(tA,2)}, {v(tB,2)}')
        a(f'v_pk_add_f32 {C_}, {v(tA,2)}, {v(tB,2)} {NEG}')
        a(f'v_pk_add_f32 {v(tA,2)}, {A_}, {E_}')
        a(f'v_pk_add_f32 {E_}, {A_}, {E_} {NEG}')
        if i == 0:
            a(f'v_pk_add_f32 {v(acc,2)}, {B_}, 0 op_sel_hi:[1,0]')
        else:
            a(f'v_pk_add_f32 {v(acc,2)}, {v(acc,2)}, {B_}')
        a(f'v_pk_fma_f32 {B_}, {B_}, {v(rr,2)}, {v(rr,2)} op_sel:[0,0,1] op_sel_hi:[1,0,1]')
        a(f'v_pk_mul_f32 {C_}, {C_}, {v(rr,2)} op_sel_hi:[1,0]')
        a(f'v_pk_mul_f32 {A_}, {v(tA,2)}, {v(rr,2)} op_sel_hi:[1,0]')
        a(f'v_pk_mul_f32 {E_}, {E_}, {v(rr,2)} op_sel_hi:[1,0]')
        if i == 0:
            a(f'v_fma_f32 v{t0}, -2.0, v{mu}, v{xb}')
            a(f'v_cndmask_b32 v{xb}, v{t0}, v{xb}, s[60:61]')
        for sq, src in enumerate((xb, xc, xa, xe)):
            a(f'v_cvt_pk_bf16_f32 v{out[sq] + i // 2}, v{src+i}, v{src+i+1}')
    a(f'''
    v_mul_u32_u24 v{t0}, {RS}, v{vrow}
    v_lshl_add_u32 v{t1}, v{vp}, 4, v{t0}
    v_and_b32 v{t2}, 3, v{vp}
    v_lshl_add_u32 v{t0}, v{t2}, 4, v{t0}
    v_lshrrev_b32 v{t2}, 2, v{vp}
    v_lshl_add_u32 v{t0}, v{t2}, 2, v{t0}
    ''')
    for sq in range(4):
        a(f'ds_write_b128 v{t1}, {v(out[sq],4)} offset:{sq*SEQ}')
        a(f'ds_write_b32 v{t0}, v{out[sq]+4} offset:{sq*SEQ + 256}')
    a(f'''
    v_add_f32 v{tA}, v{xs}, v{xs+1}
    v_sub_f32 v{tA+1}, v{xs+1}, v{xs}
    v_sub_f32 v{acc}, v{acc}, v{acc+1}
    v_add_f32 v{acc}, v{acc}, v{tA}
    ''')
    allreduce16(a, acc)
    a(f'''
    v_mul_f32 v{acc}, v{acc}, v{rr}
    v_mul_f32 v{tA}, v{tA}, v{rr}
    v_fma_f32 v{tA}, 2.0, v{mu}, v{tA}
    v_mul_f32 v{tA+1}, v{tA+1}, v{rr}
    v_mov_b32 v{tB}, 0
    v_lshlrev_b32 v{t0}, 2, v{vrow}
    s_mov_b64 exec, s[58:59]
    ds_write_b32 v{t0}, v{tA} offset:{SPEC}
    ds_write_b32 v{t0}, v{tA+1} offset:{SPEC+128}
    ds_write_b32 v{t0}, v{tB} offset:{SPEC+256}
    ds_write_b32 v{t0}, v{acc} offset:{SPEC+384}
    s_mov_b64 exec, -1
    s_waitcnt lgkmcnt(0)
    s_barrier
    ''')
    T.mark()
    V.release(mk)
    P = [[V(4) for _ in range(2)] for _ in range(3)]
    Q = [[V(4) for _ in range(2)] for _ in range(3)]
    iP = P[2]; iQ = Q[2]
    FA = [raw + 4 * i for i in range(4)]
    FB = [raw + 16, raw + 20, V(4), V(4)]
    va = V(); vsg = V()
    a(f'''
    s_mul_i32 s5, s{sPAR}, {SEQ}
    v_mul_u32_u24 v{va}, {RS}, v{vi}
    v_lshl_add_u32 v{va}, v{vg}, 4, v{va}
    v_add_u32 v{va}, s5, v{va}
    s_lshl_b32 s5, s{sPAR}, 8
    s_lshl_b32 s6, s{sPAR}, 7
    s_sub_u32 s6, 256, s6
    v_lshl_add_u32 v{t0}, v{vg}, 4, s5
    v_lshl_add_u32 v{t1}, v{vg}, 4, s6
    ''')
    for mt in range(2):
        a(f'ds_read_b128 {v(iP[mt],4)}, v{t0} offset:{SPEC + 64*mt}')
        a(f'ds_read_b128 {v(iQ[mt],4)}, v{t1} offset:{SPEC + 64*mt}')
    def rd(ks):
        F = FA if ks % 2 == 0 else FB
        for cs_ in range(2):
            for mt in range(2):
                a(f'ds_read_b128 {v(F[2*cs_+mt],4)}, v{va} offset:{2*cs_*SEQ + 16*mt*RS + 64*ks}')
    rd(0)
    a(f'v_lshlrev_b32 v{vsg}, 31, v{vi}')
    a('s_waitcnt lgkmcnt(4)')
    for mt in range(2):
        for r in range(4):
            a(f'v_xor_b32 v{iP[mt]+r}, v{vsg}, v{iP[mt]+r}')
            a(f'v_xor_b32 v{iQ[mt]+r}, v{vsg}, v{iQ[mt]+r}')
    for ks in range(5):
        F = FA if ks % 2 == 0 else FB
        if ks < 4:
            rd(ks + 1)
            a('s_waitcnt lgkmcnt(4)')
        else:
            a('s_waitcnt lgkmcnt(0)')
        for z in range(3):
            if z == 2:
                a(f's_cmp_eq_u32 s{sCNT}, 0')
                a(f's_cbranch_scc1 A_SKIP_M{ks}')
            for mt in range(2):
                c = v(iP[mt],4) if ks == 0 else v(P[z][mt],4)
                a(f'v_mfma_f32_16x16x32_bf16 {v(P[z][mt],4)}, {v(F[mt],4)}, {v(Bc[z][ks],4)}, {c}')
                c = v(iQ[mt],4) if ks == 0 else v(Q[z][mt],4)
                a(f'v_mfma_f32_16x16x32_bf16 {v(Q[z][mt],4)}, {v(F[2+mt],4)}, {v(Bs[z][ks],4)}, {c}')
        a.label(f'A_SKIP_M{ks}')
        for ins in a.hist[-4:]: ins.states = 0
    T.mark()
    vy = V()
    a(f'''
    s_mul_i32 s5, s{sN2}, {N2S}
    s_mul_i32 s6, s{sPAR}, {164*16}
    s_add_u32 s5, s5, s6
    s_lshl_b32 s6, s{sT0}, 8
    s_add_u32 s5, s5, s6
    v_mul_u32_u24 v{vy}, {QS}, v{vg}
    v_lshl_add_u32 v{vy}, v{vi}, 4, v{vy}
    v_add_u32 v{vy}, s5, v{vy}
    s_mov_b32 s7, {4*QS}
    ''')
    def step1(z, Bq, Yr, Yi, O, store):
        for kt in range(2):
            for mt in range(2):
                c = '0' if mt == 0 else v(Yr[kt],4)
                a(f'v_mfma_f32_16x16x32_bf16 {v(Yr[kt],4)}, {v(Are[kt][mt],4)}, {v(Bq[mt],4)}, {c}')
                c = '0' if mt == 0 else v(Yi[kt],4)
                a(f'v_mfma_f32_16x16x32_bf16 {v(Yi[kt],4)}, {v(Aim[kt][mt],4)}, {v(Bq[mt],4)}, {c}')
    def fin(z, Yr, Yi, O, va_, off):
        for kt in range(2):
            for r in range(4):
                a(f'v_cvt_pk_bf16_f32 v{O[kt]+r}, v{Yr[kt]+r}, v{Yi[kt]+r}')
            so = '0' if kt == 0 else 's7'
            a(f'buffer_store_dwordx4 {v(O[kt],4)}, v{va_}, s[{SY}:{SY+3}], {so} offen offset:{off}{sc}')
    def regs_for(z):
        return ([Bc[z][0], Bc[z][1]], [Bc[z][2], Bc[z][3]], [Bs[z][0], Bs[z][1]], [Bs[z][2], Bs[z][3]])
    def pack(z):
        Bq = regs_for(z)[0]
        for mt in range(2):
            for r in range(4):
                a(f'v_cvt_pk_bf16_f32 v{Bq[mt]+r}, v{P[z][mt]+r}, v{Q[z][mt]+r}')
    a('s_nop 7')
    for z in range(2):
        pack(z)
    for z in range(2):
        Bq, Yr, Yi, O = regs_for(z)
        step1(z, Bq, Yr, Yi, O, None)
    Bq, Yr, Yi, O = regs_for(2)
    a(f's_cmp_eq_u32 s{sCNT}, 0')
    a('s_cbranch_scc1 A_S1_NOT3')
    pack(2)
    a(f'v_add_u32 v{t2}, 512, v{vy}')
    a('s_branch A_S1_DO3')
    a.label('A_S1_NOT3')
    a('s_cmp_eq_u32 s4, 2')
    a('s_cbranch_scc0 A_S1_NO3')
    a(f'v_lshlrev_b32 v{t0}, 4, v{vg}')
    for mt in range(2):
        a(f'ds_read_b128 {v(Yr[mt],4)}, v{t0} offset:{SPEC + 384 + 64*mt}')
    a(f'v_add_u32 v{t2}, {(160 - 96) * 16}, v{vy}')
    a(f'v_cmp_gt_u32 vcc, 4, v{vi}')
    a(f'v_mov_b32 v{t1}, 0x7fffffff')
    a(f'v_cndmask_b32 v{t2}, v{t1}, v{t2}, vcc')
    a('s_waitcnt lgkmcnt(0)')
    for mt in range(2):
        for r in range(4):
            a(f'v_cvt_pk_bf16_f32 v{Bq[mt]+r}, v{Yr[mt]+r}, 0')
    a.label('A_S1_DO3')
    a('s_nop 2')
    step1(2, Bq, Yr, Yi, O, None)
    fin(2, Yr, Yi, O, t2, 0)
    a.label('A_S1_NO3')
    a('s_nop 7')
    for z in range(2):
        Bq, Yr, Yi, O = regs_for(z)
        fin(z, Yr, Yi, O, vy, 256 * z)
    T.mark()
    hi = V.hi
    if merged:
        hi = max(hi, gen_mid(a, True, T))
    else:
        a('s_waitcnt vmcnt(0)')
        T.mark()
        T.flush(t0, t1)
        a('s_endpgm')
    return hi

def gen_mid_alone(a):
    T = Stamps(a, 1)
    T.mark()
    return gen_mid(a, False, T)

def gen_mid(a, merged, T):
    V = VAlloc(1)
    SY, SU, SR, SI, SD = 36, 40, 44, 48, 60
    sQ, sMU = 52, 53
    sc = ' sc1' if merged else ''
    lane = V(); t0 = V(); t1 = V(); vi = V(); vg = V(); vy = V(); vw = V()
    if merged:
        srd(a, SD, S_DBG, 256)
        a(f'''
        s_waitcnt vmcnt(0)
        s_barrier
        v_mov_b32 v{t0}, 1
        v_mov_b32 v{t1}, 0
        s_cmp_eq_u32 s4, 0
        s_cbranch_scc0 M_NOSIG
        s_mov_b64 exec, 1
        buffer_atomic_add v{t0}, v{t1}, s[{SD}:{SD+3}], 0 offen sc1
        s_mov_b64 exec, -1
        ''')
        a.label('M_NOSIG')
        T.mark()
        a('s_cmp_ge_u32 s2, 41')
        a('s_cbranch_scc1 M_EXIT')
    srd(a, SY, S_WS, YBYTES + GUARD, Y_OFF - GUARD)
    srd(a, SU, S_WS, YBYTES + GUARD, U_OFF - GUARD)
    srd(a, SR, S_WR, 2048 * 642)
    srd(a, SI, S_WI, 2048 * 642)
    a(f'''
    s_mul_i32 s5, s2, 52
    s_lshr_b32 s{sQ}, s5, 8
    s_mul_i32 s5, s{sQ}, 5
    s_sub_u32 s5, s2, s5
    s_lshl_b32 s5, s5, 3
    s_add_u32 s{sMU}, s5, s4
    s_lshl_b32 s6, s{sMU}, 6
    s_add_u32 s6, s6, {GUARD}
    s_lshl_b32 s7, s{sMU}, 4
    s_cmp_eq_u32 s2, 40
    s_cselect_b32 s{sQ}, s4, s{sQ}
    s_cselect_b32 s6, 0, s6
    s_cselect_b32 s7, 638, s7
    s_mul_i32 s5, s{sQ}, {QS}
    s_add_u32 s6, s6, s5
    s_mul_i32 s5, s{sQ}, {4*642}
    s_add_u32 s7, s7, s5
    v_and_b32 v{lane}, 63, v0
    v_and_b32 v{vi}, 15, v{lane}
    v_lshrrev_b32 v{vg}, 4, v{lane}
    s_mov_b32 s5, {4*N2S}
    v_mul_lo_u32 v{vy}, v{vg}, s5
    v_lshl_add_u32 v{vy}, v{vi}, 2, v{vy}
    v_add_u32 v{vy}, s6, v{vy}
    v_and_b32 v{t0}, 3, v{vi}
    v_lshl_add_u32 v{t0}, v{vg}, 7, v{t0}
    v_mul_u32_u24 v{vw}, 642, v{t0}
    v_and_b32 v{t0}, 12, v{vi}
    v_add3_u32 v{vw}, v{vw}, v{t0}, s7
    ''')
    Wf = [[[[V(4) for _ in range(2)] for _ in range(2)] for _ in range(2)] for _ in range(2)]
    n = 0
    for half in range(2):
        for kt in range(2):
            for r in range(4):
                sr = 54 + n % 4; n += 1
                a(f's_mov_b32 s{sr}, {(16*kt + r + 32*half) * 32 * 642}')
                a(f'buffer_load_dword v{Wf[1][0][half][kt]+r}, v{vw}, s[{SR}:{SR+3}], s{sr} offen')
                a(f'buffer_load_dword v{Wf[1][1][half][kt]+r}, v{vw}, s[{SI}:{SI+3}], s{sr} offen')
    Yd = [[[V(4) for _ in range(2)] for _ in range(2)] for _ in range(2)]
    def yloads():
        n = 0
        for Tl in range(2):
            for par2 in range(2):
                for ks in range(2):
                    for r in range(4):
                        sr = 54 + n % 4; n += 1
                        a(f's_mov_b32 s{sr}, {(32*ks + 16*(r//2) + 2*(r%2) + par2) * N2S}')
                        a(f'buffer_load_dword v{Yd[Tl][par2][ks]+r}, v{vy}, s[{SY}:{SY+3}], s{sr} offen offset:{164*16*Tl}{sc}')
    if not merged:
        yloads()
    Are = [[[V(4) for _ in range(2)] for _ in range(2)] for _ in range(2)]
    Aim = [[[V(4) for _ in range(2)] for _ in range(2)] for _ in range(2)]
    acc = [[[[V(4) for _ in range(2)] for _ in range(2)] for _ in range(2)] for _ in range(2)]
    tmp = acc[0][0][0][0]
    u0 = V(); u1 = V(); ang = V(2); vsg = V()
    a(f'v_lshlrev_b32 v{t0}, 2, v{vg}')
    a(f'v_cvt_f32_u32 v{t0}, v{t0}')
    a(f'v_and_b32 v{vsg}, 1, v{vi}')
    a(f'v_mul_u32_u24 v{vsg}, 0x8000, v{vsg}')
    a(f'v_lshl_or_b32 v{vsg}, v{vsg}, 16, v{vsg}')
    for kt in range(2):
        a(f'v_add_u32 v{t1}, {16*kt}, v{vi}')
        a(f'v_cvt_f32_u32 v{t1}, v{t1}')
        a(f'v_mul_f32 v{u1}, {f32(1/64)}, v{t1}')
        a(f'v_mul_f32 v{u0}, v{u1}, v{t0}')
        for par2 in range(2):
            for r in range(4):
                p = tmp + 2 * r
                a(f'v_fmamk_f32 v{ang + r % 2}, v{u1}, {f32(16*(r//2) + 2*(r%2) + par2)}, v{u0}')
                a(f'v_cos_f32 v{p}, v{ang + r % 2}')
                a(f'v_sin_f32 v{p+1}, v{ang + r % 2}')
            for r in range(4):
                p = tmp + 2 * r
                a(f'v_cvt_pk_bf16_f32 v{Are[kt][par2][0]+r}, v{p}, v{p+1}')
                a(f'v_cvt_pk_bf16_f32 v{Aim[kt][par2][0]+r}, -v{p+1}, v{p}')
                a(f'v_xor_b32 v{Are[kt][par2][1]+r}, v{vsg}, v{Are[kt][par2][0]+r}')
                a(f'v_xor_b32 v{Aim[kt][par2][1]+r}, v{vsg}, v{Aim[kt][par2][0]+r}')
    a('s_mov_b32 s58, 0xffff0000')
    a('s_waitcnt vmcnt(0)' if merged else 's_waitcnt vmcnt(32)')
    for ri in range(2):
        for half in range(2):
            for kt in range(2):
                for r in range(4):
                    s_ = Wf[1][ri][half][kt] + r
                    a(f'v_lshlrev_b32 v{Wf[0][ri][half][kt]+r}, 16, v{s_}')
                    a(f'v_and_b32 v{s_}, s58, v{s_}')
    T.mark()
    if merged:
        a('s_cmp_eq_u32 s4, 0')
        a('s_cbranch_scc0 M_POLLED')
        a(f'v_mov_b32 v{t1}, 0')
        a.label('M_POLL')
        a(f'buffer_load_dword v{t0}, v{t1}, s[{SD}:{SD+3}], 0 offen sc1')
        a('s_waitcnt vmcnt(0)')
        a(f'v_readfirstlane_b32 s5, v{t0}')
        a('s_nop 3')
        a('s_cmp_ge_u32 s5, 64')
        a('s_cbranch_scc1 M_POLLED')
        a('s_sleep 2')
        a('s_branch M_POLL')
        a.label('M_POLLED')
        a('s_barrier')
        T.mark()
        yloads()
    NEG = 'neg_lo:[0,1] neg_hi:[0,1]'
    def dft(Tl, D):
        for ks in range(2):
            for par2 in range(2):
                for kt in range(2):
                    for c_, M in enumerate((Are, Aim)):
                        d = v(acc[Tl][par2][kt][c_], 4)
                        a(f'v_mfma_f32_16x16x32_bf16 {d}, {v(M[kt][par2][ks],4)}, {v(D[par2][ks],4)}, {"0" if ks == 0 else d}')
    def bfly(Tl):
        for kt in range(2):
            for c_ in range(2):
                for r in (0, 2):
                    E = v(acc[Tl][0][kt][c_] + r, 2); O = v(acc[Tl][1][kt][c_] + r, 2)
                    a(f'v_pk_add_f32 {v(ang,2)}, {E}, {O} {NEG}')
                    a(f'v_pk_add_f32 {E}, {E}, {O}')
                    a(f'v_pk_add_f32 {O}, {v(ang,2)}, 0 op_sel_hi:[1,0]') if False else None
                    a(f'v_pk_mov_b32 {O}, {v(ang,2)}, {v(ang,2)} op_sel:[0,1]')
    tz = [V(2), V(2), V(2), V(2)]
    def filt(Tl):
        for kt in range(2):
            for r in (0, 2):
                Er = v(acc[Tl][0][kt][0] + r, 2); Or = v(acc[Tl][1][kt][0] + r, 2)
                Ei = v(acc[Tl][0][kt][1] + r, 2); Oi = v(acc[Tl][1][kt][1] + r, 2)
                a(f'v_pk_add_f32 {v(tz[0],2)}, {Er}, {Or}')
                a(f'v_pk_add_f32 {v(tz[1],2)}, {Ei}, {Oi}')
                a(f'v_pk_add_f32 {Er}, {Er}, {Or} {NEG}')
                a(f'v_pk_add_f32 {Ei}, {Ei}, {Oi} {NEG}')
                for half, (xr, xi) in enumerate(((v(tz[0],2), v(tz[1],2)), (Er, Ei))):
                    wr = v(Wf[Tl][0][half][kt] + r, 2); wi = v(Wf[Tl][1][half][kt] + r, 2)
                    zr, zi = (Or, Oi) if half == 0 else (v(tz[2],2), v(tz[3],2))
                    a(f'v_pk_mul_f32 {zr}, {xr}, {wr}')
                    a(f'v_pk_mul_f32 {zi}, {xr}, {wi}')
                    a(f'v_pk_fma_f32 {zr}, {xi}, {wi}, {zr} neg_lo:[1,0,0] neg_hi:[1,0,0]')
                    a(f'v_pk_fma_f32 {zi}, {xi}, {wr}, {zi}')
                    zr0 = acc[Tl][1][kt][0] + r if half == 0 else tz[2]
                    zi0 = acc[Tl][1][kt][1] + r if half == 0 else tz[3]
                    for par2 in range(2):
                        a(f'v_cvt_pk_bf16_f32 v{Yd[Tl][par2][half] + 2*kt + r//2}, v{zr0+par2}, -v{zi0+par2}')
    def fin(Tl):
        n = 0
        for nt in range(2):
            for r in (0, 2):
                Er = v(acc[Tl][0][nt][0] + r, 2); Or = v(acc[Tl][1][nt][0] + r, 2)
                Ei = v(acc[Tl][0][nt][1] + r, 2); Oi = v(acc[Tl][1][nt][1] + r, 2)
                a(f'v_pk_add_f32 {v(tz[0],2)}, {Er}, {Or}')
                a(f'v_pk_add_f32 {v(tz[1],2)}, {Ei}, {Oi}')
                a(f'v_pk_add_f32 {Er}, {Er}, {Or} {NEG}')
                a(f'v_pk_add_f32 {Ei}, {Ei}, {Oi} {NEG}')
                for half in range(2):
                    for j in range(2):
                        ur = (tz[0] if half == 0 else acc[Tl][0][nt][0] + r) + j
                        ui = (tz[1] if half == 0 else acc[Tl][0][nt][1] + r) + j
                        o = acc[Tl][1][nt][half] + r + j
                        a(f'v_cvt_pk_bf16_f32 v{o}, v{ur}, -v{ui}')
                        sr = 54 + n % 4; n += 1
                        a(f's_mov_b32 s{sr}, {(16*nt + r + j + 32*half) * N2S}')
                        a(f'buffer_store_dword v{o}, v{vy}, s[{SU}:{SU+3}], s{sr} offen offset:{164*16*Tl}')
    a('s_waitcnt vmcnt(16)')
    T.mark()
    dft(0, Yd[0])
    a('s_waitcnt vmcnt(0)')
    dft(1, Yd[1])
    filt(0)
    dft(0, Yd[0])
    filt(1)
    dft(1, Yd[1])
    fin(0)
    fin(1)
    T.mark()
    if merged:
        a.label('M_EXIT')
    a('s_waitcnt vmcnt(0)')
    T.mark()
    T.flush(t0, t1)
    a('s_endpgm')
    return V.hi
```

```python
from asm import *
from stamp import Stamps
import os
X = os.environ.get('X', '')

H_OFF, Y_OFF, U_OFF = 0, 8 << 20, 12 << 20
KK = 328
ONES = 0x3F803F80

S_X, S_WR, S_WI, S_WG, S_WU, S_WD, S_OUT, S_DBG, S_WS = 16, 18, 20, 24, 26, 28, 30, 32, 34

def srd(a, d, base, nbytes, off=0):
    if off:
        a(f's_add_u32 s{d}, s{base}, {off}')
        a(f's_addc_u32 s{d+1}, s{base+1}, 0')
    else:
        a(f's_mov_b32 s{d}, s{base}')
        a(f's_mov_b32 s{d+1}, s{base+1}')
    a(f's_mov_b32 s{d+2}, {nbytes}')
    a(f's_mov_b32 s{d+3}, 0x00020000')

def bf16r(a, d, x):
    a(f'v_cvt_pk_bf16_f32 v{d}, v{x}, v{x}')
    a(f'v_and_b32 v{d}, 0xffff0000, v{d}')

def ln_scalars(a, vsum, vsq_or_var, vmb, vr, t0, two_pass=False):
    bf16r(a, vmb, vsum)
    bf16r(a, t0, vsq_or_var)
    a(f'v_add_f32 v{t0}, {f32(1e-5)}, v{t0}')
    bf16r(a, t0, t0)
    a(f'v_sqrt_f32 v{t0}, v{t0}')
    bf16r(a, t0, t0)
    a(f'v_rcp_f32 v{vr}, v{t0}')

def gen_g(a, NST=20, NBUF=6):
    V = VAlloc(1)
    T = Stamps(a)
    T.mark()
    SX, SG, SU, SH = 36, 40, 44, 48
    sMB, sNB, sM0, sOA, sOW, sT, sWM, sWN, sONE = 52, 53, 54, 55, 56, 57, 58, 59, 60
    BUF = 24576
    srd(a, SX, S_X, 2048 * 1280)
    srd(a, SG, S_WG, 640 * 3072)
    srd(a, SU, S_WU, 640 * 3072)
    srd(a, SH, S_WS, 2048 * 3072, H_OFF)
    a(f'''
    s_and_b32 s5, s3, 7
    s_lshr_b32 s6, s3, 3
    s_lshr_b32 s7, s5, 2
    s_lshl_b32 s7, s7, 3
    s_and_b32 s8, s6, 7
    s_add_u32 s{sMB}, s7, s8
    s_and_b32 s7, s5, 3
    s_mul_i32 s7, s7, 3
    s_lshr_b32 s8, s6, 3
    s_add_u32 s{sNB}, s7, s8
    s_lshr_b32 s{sWM}, s4, 2
    s_and_b32 s{sWN}, s4, 3
    s_lshl_b32 s{sM0}, s4, 10
    s_mov_b32 s{sOA}, 0
    s_mov_b32 s{sOW}, 0
    s_mov_b32 s{sONE}, {ONES}
    ''')
    lane = V(); t0 = V(); t1 = V(); t2 = V(); vA = V(); vW = V()
    a(f'v_and_b32 v{lane}, 63, v0')
    a(f'''
    s_and_b32 s5, s4, 1
    s_lshl_b32 s5, s5, 10
    s_lshl_b32 s6, s{sMB}, 2
    s_add_u32 s5, s5, s6
    s_lshr_b32 s6, s4, 1
    s_add_u32 s5, s5, s6
    s_mul_i32 s5, s5, 1280
    s_mov_b32 s6, {64*1280}
    v_lshrrev_b32 v{t0}, 2, v{lane}
    v_mul_lo_u32 v{t0}, v{t0}, s6
    v_and_b32 v{t1}, 3, v{lane}
    v_lshrrev_b32 v{t2}, 4, v{lane}
    v_xor_b32 v{t1}, v{t1}, v{t2}
    v_lshlrev_b32 v{t1}, 4, v{t1}
    v_add3_u32 v{vA}, v{t0}, v{t1}, s5
    ''')
    a(f'''
    s_mul_i32 s5, s4, {4*3072}
    s_lshl_b32 s6, s{sNB}, 8
    s_add_u32 s5, s5, s6
    v_mul_u32_u24 v{t0}, 3072, v{t2}
    v_lshlrev_b32 v{t1}, 2, v{t2}
    v_and_b32 v{vW}, 15, v{lane}
    v_xor_b32 v{t1}, v{t1}, v{vW}
    v_lshlrev_b32 v{t1}, 4, v{t1}
    v_add3_u32 v{vW}, v{t0}, v{t1}, s5
    ''')
    def dma(st):
        b = (st % NBUF) * BUF
        a(f's_add_u32 m0, s{sM0}, {b}')
        a(f'buffer_load_dwordx4 v{vA}, s[{SX}:{SX+3}], s{sOA} offen lds')
        a(f's_add_u32 m0, s{sM0}, {b + 8192}')
        a(f'buffer_load_dwordx4 v{vW}, s[{SG}:{SG+3}], s{sOW} offen lds')
        a(f's_add_u32 m0, s{sM0}, {b + 16384}')
        a(f'buffer_load_dwordx4 v{vW}, s[{SU}:{SU+3}], s{sOW} offen lds')
        a(f's_add_u32 s{sOA}, s{sOA}, 64')
        a(f's_add_u32 s{sOW}, s{sOW}, {32*3072}')
    for st in range(NBUF - 1):
        dma(st)
    NBG = NBUF // 2
    ax = [[[V() for _ in range(2)] for _ in range(2)] for _ in range(NBG)]
    aw = [[[V() for _ in range(2)] for _ in range(2)] for _ in range(NBG)]
    h = V(); l32 = V()
    a(f'''
    v_lshrrev_b32 v{h}, 5, v{lane}
    v_and_b32 v{l32}, 31, v{lane}
    v_bfe_u32 v{t0}, v{lane}, 2, 2
    v_xor_b32 v{t0}, v{t0}, v{h}
    s_and_b32 s5, s{sWN}, 2
    v_xor_b32 v{t0}, s5, v{t0}
    v_lshlrev_b32 v{t0}, 4, v{t0}
    v_lshl_add_u32 v{t0}, v{l32}, 6, v{t0}
    s_lshl_b32 s5, s{sWM}, 12
    s_and_b32 s6, s{sWN}, 1
    s_lshl_b32 s6, s6, 11
    s_add_u32 s5, s5, s6
    v_add_u32 v{ax[0][0][0]}, s5, v{t0}
    v_xor_b32 v{ax[0][0][1]}, 32, v{ax[0][0][0]}
    v_xor_b32 v{ax[0][1][0]}, 0x800, v{ax[0][0][0]}
    v_xor_b32 v{ax[0][1][1]}, 0x800, v{ax[0][0][1]}
    ''')
    a(f'''
    v_bfe_u32 v{t0}, v{lane}, 2, 2
    v_lshl_add_u32 v{t1}, v{h}, 3, v{t0}
    v_lshlrev_b32 v{t1}, 8, v{t1}
    v_xor_b32 v{t0}, s{sWN}, v{t0}
    v_lshl_add_u32 v{t1}, v{t0}, 6, v{t1}
    v_bfe_u32 v{t0}, v{lane}, 4, 1
    v_lshl_add_u32 v{t1}, v{t0}, 5, v{t1}
    v_and_b32 v{t0}, 3, v{lane}
    v_lshl_add_u32 v{t1}, v{t0}, 3, v{t1}
    s_lshr_b32 s5, s{sWN}, 1
    s_lshl_b32 s5, s5, 12
    v_add_u32 v{t1}, s5, v{t1}
    s_lshl_b32 s5, s{sWM}, 13
    s_add_u32 s6, s5, 8192
    s_sub_u32 s5, 16384, s5
    v_add_u32 v{aw[0][0][0]}, s6, v{t1}
    v_add_u32 v{aw[0][1][0]}, s5, v{t1}
    v_xor_b32 v{aw[0][0][1]}, 0x1000, v{aw[0][0][0]}
    v_xor_b32 v{aw[0][1][1]}, 0x1000, v{aw[0][1][0]}
    ''')
    for bg in range(1, NBG):
        for i in range(2):
            for j in range(2):
                a(f'v_add_u32 v{ax[bg][i][j]}, {bg * 2 * BUF}, v{ax[0][i][j]}')
                a(f'v_add_u32 v{aw[bg][i][j]}, {bg * 2 * BUF}, v{aw[0][i][j]}')
    acc = [[V(16, 4) for _ in range(2)] for _ in range(2)]
    fx = [[V(4) for _ in range(2)] for _ in range(2)]
    fw = [[V(4) for _ in range(2)] for _ in range(2)]
    vsum = V(2); vsq = V(2); tp = [V(2), V(2)]; sMASK = sONE
    vcs = V(4); sel = V(4)
    a(f's_mov_b32 s{sMASK}, 0xffff0000')
    for r in (vsum, vsq):
        a(f'v_mov_b32 v{r}, 0\n v_mov_b32 v{r+1}, 0')
    a(f"""
    v_lshrrev_b32 v{t0}, 4, v{lane}
    v_xor_b32 v{t0}, v{t0}, v{lane}
    v_and_b32 v{t0}, 1, v{t0}
    v_cmp_eq_u32 vcc, 0, v{t0}
    v_mov_b32 v{t1}, {ONES}
    v_cndmask_b32 v{sel}, 0, v{t1}, vcc
    v_mov_b32 v{sel+1}, v{sel}
    v_mov_b32 v{sel+2}, v{sel}
    v_mov_b32 v{sel+3}, v{sel}
    """)
    def reads(u):
        st, step = u // 2, u % 2
        b = st % NBUF
        bg, off = b // 2, (b % 2) * BUF
        ps = u % 2
        L = []
        for tau in range(2):
            L.append(f'ds_read_b64_tr_b16 {v(fw[ps][tau], 2)}, v{aw[bg][tau][step]} offset:{off}')
            L.append(f'ds_read_b64_tr_b16 {v(fw[ps][tau] + 2, 2)}, v{aw[bg][tau][step]} offset:{off + 1024}')
            L.append(f'ds_read_b128 {v(fx[ps][tau], 4)}, v{ax[bg][tau][step]} offset:{off}')
        return L
    def dma_l(st):
        b = (st % NBUF) * BUF
        return [[f's_add_u32 m0, s{sM0}, {b}', f'buffer_load_dwordx4 v{vA}, s[{SX}:{SX+3}], s{sOA} offen lds', f's_add_u32 s{sOA}, s{sOA}, 64'],
                [f's_add_u32 m0, s{sM0}, {b + 8192}', f'buffer_load_dwordx4 v{vW}, s[{SG}:{SG+3}], s{sOW} offen lds'],
                [f's_add_u32 m0, s{sM0}, {b + 16384}', f'buffer_load_dwordx4 v{vW}, s[{SU}:{SU+3}], s{sOW} offen lds', f's_add_u32 s{sOW}, s{sOW}, {32*3072}']]
    def stat_ops(ps, i):
        r = fx[ps][0] + i; t = tp[i % 2]
        return [f'v_lshlrev_b32 v{t}, 16, v{r}', f'v_and_b32 v{t+1}, s{sMASK}, v{r}', f'v_add_f32 v{vsum}, v{vsum}, v{t}', f'v_add_f32 v{vsum+1}, v{vsum+1}, v{t+1}',
                f'v_fmac_f32 v{vsq}, v{t}, v{t}', f'v_fmac_f32 v{vsq+1}, v{t+1}, v{t+1}']
    def step(u, fill):
        ps = u % 2
        order = [(0, 0), (1, 1), (0, 1), (1, 0)]
        for k, (sg, tau) in enumerate(order):
            if k == 0: a('s_waitcnt lgkmcnt(3)')
            if k == 1: a(f's_waitcnt lgkmcnt({sum(1 for q in fill[0] if q.startswith("ds_"))})')
            c = '0' if u == 0 else v(acc[sg][tau], 16)
            a(f'v_mfma_f32_32x32x16_bf16 {v(acc[sg][tau], 16)}, {v(fw[ps][tau], 4)}, {v(fx[ps][sg], 4)}, {c}')
            for q in fill[k]: a(q)
        if 'nocs' not in X:
            c = '0' if u == 0 else v(vcs, 4)
            a(f'v_mfma_f32_16x16x32_bf16 {v(vcs, 4)}, {v(fw[ps][0], 4)}, {v(sel, 4)}, {c}')
        for q in fill[4]: a(q)
    T.mark()
    a(f's_waitcnt vmcnt({3 * (NBUF - 2)})')
    a('s_barrier')
    T.mark()
    a('s_waitcnt lgkmcnt(0)')
    for q in reads(0): a(q)
    for st in range(NST):
        R = reads(2 * st + 1)
        S = [stat_ops(0, i) for i in range(4)]
        if 'nostat' in X: S = [[], [], [], []]
        step(2 * st, [R[0:3], R[3:6] + S[0], S[1], S[2], S[3]])
        fill = [[], [], [], [], []]
        if st + 1 < NST:
            outst = min(NST - 1, st + NBUF - 2) - (st + 1)
            a(f's_waitcnt vmcnt({3 * outst})')
            a('s_barrier')
            R = reads(2 * st + 2)
            D = dma_l(st + NBUF - 1) if st + NBUF - 1 < NST else [[], [], []]
            fill = [R[0:3], R[3:6], D[0], D[1], D[2]]
        step(2 * st + 1, fill)
    T.mark()
    a('s_waitcnt lgkmcnt(0)')
    a(f'v_add_f32 v{vsum}, v{vsum}, v{vsum+1}\n v_add_f32 v{vsum+1}, v{vsq}, v{vsq+1}')
    for r in (vsum, vsum + 1):
        a(f'v_mov_b32 v{t0}, v{r}')
        a(f'v_permlane32_swap_b32 v{r}, v{t0}')
        a(f'v_add_f32 v{r}, v{r}, v{t0}')
    a('s_barrier')
    a(f'''
    s_lshl_b32 s5, s{sWM}, 10
    s_and_b32 s6, s{sWN}, 1
    s_lshl_b32 s6, s6, 9
    s_add_u32 s5, s5, s6
    s_lshr_b32 s7, s{sWN}, 1
    s_lshl_b32 s7, s7, 8
    v_lshlrev_b32 v{t0}, 3, v{l32}
    v_add_u32 v{t1}, s5, v{t0}
    v_add_u32 v{t2}, s7, v{t1}
    ds_write_b64 v{t2}, {v(vsum, 2)}
    s_lshl_b32 s6, s{sWM}, 9
    s_lshl_b32 s7, s{sWN}, 7
    s_add_u32 s6, s6, s7
    s_add_u32 s6, s6, 4096
    v_and_b32 v{t2}, 1, v{lane}
    v_lshl_add_u32 v{t2}, v{t2}, 6, s6
    v_and_b32 v{t0}, 48, v{lane}
    v_add_u32 v{t2}, v{t2}, v{t0}
    ds_write_b128 v{t2}, {v(vcs, 4)}
    s_waitcnt lgkmcnt(0)
    s_barrier
    ''')
    st = [[V(2), V(2)] for _ in range(2)]
    cs = [V(16, 4) for _ in range(2)]
    a(f'ds_read_b64 {v(st[0][0], 2)}, v{t1}')
    a(f'ds_read_b64 {v(st[0][1], 2)}, v{t1} offset:256')
    a(f'v_xor_b32 v{t1}, 0x200, v{t1}')
    a(f'ds_read_b64 {v(st[1][0], 2)}, v{t1}')
    a(f'ds_read_b64 {v(st[1][1], 2)}, v{t1} offset:256')
    a(f'v_lshl_add_u32 v{t2}, v{h}, 4, s6')
    for q in range(4):
        a(f'ds_read_b128 {v(cs[0] + 4 * q, 4)}, v{t2} offset:{32 * q}')
    a(f'v_xor_b32 v{t2}, 0x200, v{t2}')
    for q in range(4):
        a(f'ds_read_b128 {v(cs[1] + 4 * q, 4)}, v{t2} offset:{32 * q}')
    vst = V(); mb_ = [V(2), V(2)]
    a(f'''
    s_lshl_b32 s5, s{sMB}, 2
    s_lshl_b32 s6, s{sWM}, 1
    s_add_u32 s5, s5, s6
    s_and_b32 s6, s{sWN}, 1
    s_add_u32 s7, s5, s6
    s_xor_b32 s8, s7, 1
    s_mul_i32 s7, s7, {2*49152}
    s_mul_i32 s8, s8, {2*49152}
    s_lshl_b32 s5, s{sNB}, 2
    s_add_u32 s5, s5, s{sWN}
    s_lshl_b32 s5, s5, 10
    v_bfe_u32 v{t0}, v{lane}, 4, 1
    v_mul_u32_u24 v{t0}, 49152, v{t0}
    v_lshl_add_u32 v{t0}, v{h}, 8, v{t0}
    v_and_b32 v{vst}, 15, v{lane}
    v_lshl_add_u32 v{vst}, v{vst}, 4, v{t0}
    v_add_u32 v{vst}, s5, v{vst}
    s_waitcnt lgkmcnt(8)
    ''')
    for sg in range(2):
        s0, s1 = st[sg]
        a(f'v_pk_add_f32 {v(s0, 2)}, {v(s0, 2)}, {v(s1, 2)}')
        a(f'v_mul_f32 v{s0}, {f32(1/640)}, v{s0}')
        a(f'v_mul_f32 v{s0+1}, {f32(1/640)}, v{s0+1}')
        a(f'v_fma_f32 v{s0+1}, -v{s0}, v{s0}, v{s0+1}')
        a(f'v_max_f32 v{s0+1}, 0, v{s0+1}')
        ln_scalars(a, s0, s0 + 1, mb_[sg], mb_[sg] + 1, t0)
        a(f'v_mul_f32 v{mb_[sg]+1}, v{mb_[sg]+1}, v{mb_[sg]+1}')
    a('s_waitcnt lgkmcnt(0)')
    for sg in range(2):
        m = mb_[sg]
        for i in range(0, 16, 2):
            for tau in range(2):
                d = v(acc[sg][tau] + i, 2)
                a(f'v_pk_fma_f32 {d}, {v(cs[tau] + i, 2)}, {v(m, 2)}, {d} op_sel_hi:[1,0,1] neg_lo:[0,1,0] neg_hi:[0,1,0]')
            d = v(acc[sg][0] + i, 2)
            a(f'v_pk_mul_f32 {d}, {d}, {v(acc[sg][1] + i, 2)}')
            a(f'v_pk_mul_f32 {d}, {d}, {v(m, 2)} op_sel:[0,1] op_sel_hi:[1,1]')
            a(f'v_cvt_pk_bf16_f32 v{acc[sg][1] + i // 2}, v{acc[sg][0] + i}, v{acc[sg][0] + i + 1}') if False else None
        for i in range(0, 16, 2):
            a(f'v_cvt_pk_bf16_f32 v{acc[sg][1] + i // 2}, v{acc[sg][0] + i}, v{acc[sg][0] + i + 1}')
        so = 's7' if sg == 0 else 's8'
        for p in range(2):
            a(f'buffer_store_dwordx4 {v(acc[sg][1] + 4 * p, 4)}, v{vst}, s[{SH}:{SH+3}], {so} offen offset:{512 * p}')
    T.mark()
    a('s_waitcnt vmcnt(0)')
    T.mark()
    T.flush(t0, t1)
    a('s_endpgm')
    return V.hi
```

```python
from asm import *
from stamp import Stamps
from k1g import srd, S_X, S_WD, S_OUT, S_WS, H_OFF, U_OFF, KK
from k1a import N2S, QS, YBYTES
import os
X = os.environ.get('X', '')
SLOT = 5120; RING = 6 * SLOT; PART = 4 * RING
LDS = PART + 40960
PS = 336

def gen_k2(a):
    T = Stamps(a, 2)
    T.mark()
    SH, SW, SU, SX, SO = 36, 40, 44, 48, 60
    sMB, sNB, sWV = 52, 53, 54
    srd(a, SH, S_WS, 2048 * 3072, H_OFF)
    srd(a, SW, S_WD, 1536 * 1280)
    srd(a, SU, S_WS, YBYTES, U_OFF)
    srd(a, SX, S_X, 2048 * 1280)
    srd(a, SO, S_OUT, 2048 * 1280)
    a(f'''
    s_and_b32 s5, s2, 7
    s_lshr_b32 s6, s2, 3
    s_lshr_b32 s7, s5, 1
    s_lshl_b32 s7, s7, 3
    s_and_b32 s8, s6, 7
    s_add_u32 s{sMB}, s7, s8
    s_and_b32 s7, s5, 1
    s_lshl_b32 s7, s7, 2
    s_lshr_b32 s8, s6, 3
    s_add_u32 s{sNB}, s7, s8
    s_and_b32 s{sWV}, s4, 3
    ''')
    V = VAlloc(1)
    lane = V(); t0 = V(); t1 = V(); t2 = V(); vi = V(); vg = V()
    a(f'''
    v_and_b32 v{lane}, 63, v0
    v_and_b32 v{vi}, 15, v{lane}
    v_lshrrev_b32 v{vg}, 4, v{lane}
    ''')
    base_mark = V.mark()
    def t6gen(V):
        m = V.mark()
        u0 = V(); u1 = V(); ang = V(2); p = V(8, 2); o = V(8, 4)
        a(f'''
        s_lshr_b32 s5, s4, 2
        s_lshl_b32 s6, s{sMB}, 1
        s_add_u32 s5, s5, s6
        s_bfe_u32 s6, s4, 0x10001
        s_lshl_b32 s6, s6, 10
        s_add_u32 s5, s5, s6
        s_and_b32 s6, s4, 1
        s_lshl_b32 s6, s6, 4
        v_lshl_add_u32 v{u1}, v{vi}, 6, s5
        v_cvt_f32_u32 v{u1}, v{u1}
        v_mul_f32 v{u1}, {f32(1/2048)}, v{u1}
        v_lshl_add_u32 v{u0}, v{vg}, 2, s6
        v_cvt_f32_u32 v{u0}, v{u0}
        v_mul_f32 v{u0}, v{u0}, v{u1}
        ''')
        for r in range(4):
            a(f'v_fmamk_f32 v{ang + r % 2}, v{u1}, {f32(r)}, v{u0}')
            a(f'v_cos_f32 v{p+2*r}, v{ang + r % 2}')
            a(f'v_sin_f32 v{p+2*r+1}, v{ang + r % 2}')
        for r in range(4):
            a(f'v_cvt_pk_bf16_f32 v{o+r}, v{p+2*r}, -v{p+2*r+1}')
            a(f'v_cvt_pk_bf16_f32 v{o+4+r}, v{p+2*r+1}, v{p+2*r}')
        a(f'''
        s_lshl_b32 s5, s4, 11
        s_add_u32 s5, s5, {PART}
        v_lshl_add_u32 v{u0}, v{lane}, 4, s5
        ds_write_b128 v{u0}, {v(o,4)}
        ds_write_b128 v{u0}, {v(o+4,4)} offset:1024
        s_waitcnt lgkmcnt(0)
        s_barrier
        ''')
        V.release(m)
    a('s_cmp_ge_u32 s4, 4')
    a('s_cbranch_scc1 K2_AF')
    sM0, sOH, sOW = 55, 56, 57
    vh = V(); vw = [V() for _ in range(5)]; vr = V()
    a(f'''
    s_mul_i32 s5, s{sMB}, {4*49152}
    s_mul_i32 s6, s{sWV}, {12*1024}
    s_add_u32 s{sOH}, s5, s6
    v_lshlrev_b32 v{vh}, 4, v{lane}
    s_mul_i32 s{sOW}, s{sWV}, {12*32*1280}
    s_mul_i32 s5, s{sNB}, 80
    s_add_u32 s{sOW}, s{sOW}, s5
    s_mul_i32 s{sM0}, s{sWV}, {RING}
    s_mov_b32 s8, 6554
    ''')
    vh2 = [vh, V(), V(), V()]
    for m in range(1, 4):
        a(f'v_add_u32 v{vh2[m]}, {49152*m}, v{vh}')
    for n in range(5):
        a(f'''
        v_add_u32 v{t0}, {64*n}, v{lane}
        v_mul_u32_u24 v{t1}, s8, v{t0}
        v_lshrrev_b32 v{t1}, 16, v{t1}
        v_mul_u32_u24 v{t2}, 10, v{t1}
        v_sub_u32 v{t0}, v{t0}, v{t2}
        v_mul_u32_u24 v{t1}, 1280, v{t1}
        v_lshl_add_u32 v{t1}, v{t0}, 4, v{t1}
        v_cmp_lt_u32 vcc, 4, v{t0}
        v_add_u32 v{t2}, 560, v{t1}
        v_cndmask_b32 v{vw[n]}, v{t1}, v{t2}, vcc
        ''')
    acc = [[V(4) for _ in range(5)] for _ in range(4)]
    hf = [[V(4) for _ in range(4)] for _ in range(6)]
    wf = [[V(4) for _ in range(5)] for _ in range(2)]
    def loads(i):
        L = []
        sl = i % 6
        for n in range(5):
            L.append([f's_add_u32 m0, s{sM0}, {sl*SLOT + n*1024}', f'buffer_load_dwordx4 v{vw[n]}, s[{SW}:{SW+3}], s{sOW} offen lds'])
        L[-1].append(f's_add_u32 s{sOW}, s{sOW}, {32*1280}')
        for m in range(4):
            L.append([f'buffer_load_dwordx4 {v(hf[sl][m],4)}, v{vh2[m]}, s[{SH}:{SH+3}], s{sOH} offen'])
        L[-1].append(f's_add_u32 s{sOH}, s{sOH}, 1024')
        return L
    for i in range(6):
        for g_ in loads(i):
            for q in g_: a(q)
    a(f'''
    v_lshrrev_b32 v{t0}, 5, v{lane}
    v_lshlrev_b32 v{t0}, 4, v{t0}
    v_bfe_u32 v{t1}, v{lane}, 4, 1
    v_lshl_add_u32 v{t0}, v{t1}, 2, v{t0}
    v_bfe_u32 v{t1}, v{lane}, 2, 2
    v_add_u32 v{t0}, v{t0}, v{t1}
    v_mul_u32_u24 v{t0}, 160, v{t0}
    v_and_b32 v{t1}, 3, v{lane}
    v_lshl_add_u32 v{t0}, v{t1}, 3, v{t0}
    v_add_u32 v{vr}, s{sM0}, v{t0}
    ''')
    hiD = V.hi
    VT = VAlloc(wf[0][0], 256)
    t6gen(VT)
    a('s_barrier')
    T.mark()
    def trs(i):
        L = []
        for nt in range(5):
            for j in range(2):
                L.append(f'ds_read_b64_tr_b16 {v(wf[i%2][nt] + 2*j, 2)}, v{vr} offset:{(i%6)*SLOT + 1280*j + 32*nt}')
        return L
    a('s_waitcnt vmcnt(49)')
    T.mark()
    for q in trs(0): a(q)
    issued = 6
    for i in range(12):
        if i + 1 < 12:
            n_out = (issued - (i + 2)) * 9 + 4
        else:
            n_out = 0
        a(f's_waitcnt vmcnt({n_out}) lgkmcnt(0)')
        fill = []
        if i + 1 < 12:
            fill += [[q] for q in trs(i + 1)]
        post = []
        if i + 6 < 12:
            L = loads(i + 6)
            fill += L[:5]
            post = L[5:]
            issued += 1
        k = 0
        for m in range(4):
            for nt in range(5):
                c = '0' if i == 0 else v(acc[m][nt], 4)
                a(f'v_mfma_f32_16x16x32_bf16 {v(acc[m][nt],4)}, {v(wf[i%2][nt],4)}, {v(hf[i%6][m],4)}, {c}')
                if k < len(fill):
                    for q in fill[k]: a(q)
                k += 1
        for g_ in post:
            for q in g_: a(q)
    T.mark()
    a(f'''
    v_mul_u32_u24 v{t0}, {PS}, v{vi}
    v_lshl_add_u32 v{t0}, v{vg}, 4, v{t0}
    v_add_u32 v{t0}, s{sM0}, v{t0}
    ''')
    for m in range(4):
        for nt in range(5):
            a(f'ds_write_b128 v{t0}, {v(acc[m][nt],4)} offset:{16*m*PS + 64*nt}')
    a('s_branch K2_FIN')
    a.label('K2_AF')
    a.hist = []
    T.n = min(T.n, 1)
    V.release(base_mark)
    sPAR, sT0 = 55, 56
    vu = V()
    a(f'''
    s_lshr_b32 s{sPAR}, s{sWV}, 1
    s_and_b32 s{sT0}, s{sWV}, 1
    s_mul_i32 s{sT0}, s{sT0}, 5
    s_mul_i32 s5, s{sMB}, {2*N2S}
    s_mul_i32 s6, s{sPAR}, {164*16}
    s_add_u32 s5, s5, s6
    s_lshl_b32 s6, s{sT0}, 8
    s_add_u32 s5, s5, s6
    v_mul_u32_u24 v{vu}, {QS}, v{vg}
    v_lshl_add_u32 v{vu}, v{vi}, 4, v{vu}
    v_add_u32 v{vu}, s5, v{vu}
    s_mov_b32 s8, {4*QS}
    s_mov_b32 s9, {N2S}
    s_mov_b32 s10, {N2S + 4*QS}
    ''')
    uf = [[[V(4) for _ in range(2)] for _ in range(2)] for _ in range(3)]
    so_ = [['0', 's8'], ['s9', 's10']]
    def uload(z_, ring, off):
        for aa in range(2):
            for kp in range(2):
                a(f'buffer_load_dwordx4 {v(uf[ring][aa][kp],4)}, v{vu}, s[{SU}:{SU+3}], {so_[aa][kp]} offen offset:{off}')
    uload(-1, 2, 160 * 16)
    uload(0, 0, 0)
    uload(1, 1, 256)
    T6 = [[[[V(4) for _ in range(2)] for _ in range(2)] for _ in range(2)] for _ in range(2)]
    accA = [[V(4) for _ in range(3)] for _ in range(4)]
    D6 = [[V(4) for _ in range(2)] for _ in range(2)]
    zf = [V(4) for _ in range(4)]
    G = [V(4) for _ in range(3)]
    nyq = V(4)
    gs = [[V(2) for _ in range(4)] for _ in range(3)]
    rot = [V(2) for _ in range(3)]
    tq = V(2); kf = V();
    VT = VAlloc(accA[0][0], 256)
    t6gen(VT)
    a(f'v_lshlrev_b32 v{t0}, 4, v{lane}')
    a(f'v_add_u32 v{t0}, {PART}, v{t0}')
    for aa in range(2):
        for nh in range(2):
            for kp in range(2):
                for c_ in range(2):
                    a(f'ds_read_b128 {v(T6[aa][nh][kp][c_],4)}, v{t0} offset:{(4*aa + 2*nh + kp)*2048 + 1024*c_}')
    a(f'''
    s_lshl_b32 s5, s{sT0}, 5
    s_add_u32 s5, s5, s{sPAR}
    v_lshl_add_u32 v{kf}, v{vg}, 3, s5
    v_cvt_f32_u32 v{kf}, v{kf}
    s_mul_i32 s6, s{sNB}, 40
    v_add_u32 v{t1}, s6, v{vi}
    v_cvt_f32_u32 v{t1}, v{t1}
    s_waitcnt lgkmcnt(0)
    s_barrier
    ''')
    T.mark()
    for nt in range(3):
        a(f'v_add_f32 v{t2}, {f32(16.0*nt)}, v{t1}')
        a(f'v_mul_f32 v{tq}, {f32(32.0/640)}, v{t2}')
        a(f'v_fract_f32 v{tq}, v{tq}')
        a(f'v_cos_f32 v{rot[nt]}, v{tq}')
        a(f'v_sin_f32 v{rot[nt]+1}, v{tq}')
        for r in range(4):
            a(f'v_add_f32 v{tq+1}, {f32(2.0*r)}, v{kf}')
            a(f'v_mul_f32 v{tq+1}, v{tq+1}, v{t2}')
            a(f'v_mul_f32 v{tq+1}, {f32(1/640)}, v{tq+1}')
            a(f'v_fract_f32 v{tq+1}, v{tq+1}')
            a(f'v_cos_f32 v{gs[nt][r]}, v{tq+1}')
            a(f'v_sin_f32 v{gs[nt][r]+1}, v{tq+1}')
    def gpack():
        L = []
        for nt in range(3):
            for r in range(4):
                L.append(f'v_cvt_pk_bf16_f32 v{G[nt]+r}, v{gs[nt][r]}, -v{gs[nt][r]+1}')
        return L
    def grot():
        L = []
        for nt in range(3):
            C, S = rot[nt], rot[nt] + 1
            for r in range(4):
                c, s_ = gs[nt][r], gs[nt][r] + 1
                t = tq + r % 2
                L += [f'v_mul_f32 v{t}, v{s_}, v{S}', f'v_mul_f32 v{s_}, v{s_}, v{C}', f'v_fmac_f32 v{s_}, v{c}, v{S}', f'v_fma_f32 v{c}, v{c}, v{C}, -v{t}']
        return L
    a(f's_cmp_eq_u32 s{sWV}, 0')
    a('s_cbranch_scc0 K2_NONYQ')
    a('s_waitcnt vmcnt(8)')
    for aa in range(2):
        for nh in range(2):
            d = v(zf[2*aa+nh], 4)
            for kp in range(2):
                a(f'v_mfma_f32_16x16x32_bf16 {d}, {v(uf[2][aa][kp],4)}, {v(T6[aa][nh][kp][0],4)}, {"0" if kp == 0 else d}')
    for m in range(4):
        a(f'v_mul_f32 v{nyq+m}, 0.5, v{zf[m]}')
    a.label('K2_NONYQ')
    a('s_nop 4')
    a('s_waitcnt vmcnt(8)')
    uload(2, 2, 512)
    a(f'''
    v_cmp_gt_u32 s[58:59], 16, v{lane}
    s_cmp_eq_u32 s{sWV}, 0
    s_cselect_b64 s[58:59], s[58:59], 0
    ''')
    for z_ in range(5):
        ring = z_ % 3
        a(f's_waitcnt vmcnt({4 * min(2, 4 - z_)})')
        fillv = (grot() if z_ > 0 else []) + gpack()
        fi = 0
        nper = (len(fillv) + 15) // 16
        for aa in range(2):
            for kp in range(2):
                for nh in range(2):
                    for c_ in range(2):
                        d = v(D6[nh][c_], 4)
                        a(f'v_mfma_f32_16x16x32_bf16 {d}, {v(uf[ring][aa][kp],4)}, {v(T6[aa][nh][kp][c_],4)}, {"0" if kp == 0 else d}')
                        for q in fillv[fi:fi + nper]: a(q)
                        fi += nper
            for nh in range(2):
                if z_ == 0:
                    a(f'v_mul_f32 v{t0}, 0.5, v{D6[nh][0]}')
                    a(f'v_cndmask_b32 v{D6[nh][0]}, v{D6[nh][0]}, v{t0}, s[58:59]')
                    a(f'v_cndmask_b32 v{D6[nh][1]}, v{D6[nh][1]}, v{nyq + 2*aa + nh}, s[58:59]')
                for r in range(4):
                    a(f'v_cvt_pk_bf16_f32 v{zf[2*aa+nh]+r}, v{D6[nh][0]+r}, v{D6[nh][1]+r}')
        if z_ + 3 < 5:
            uload(z_ + 3, ring, 256 * (z_ + 3))
        if z_ == 0:
            a(f'v_lshlrev_b32 v{t0}, 31, v{vi}')
            a(f'v_or_b32 v{t0}, 0x3f803f80, v{t0}')
            for nt in range(3):
                a(f'v_cndmask_b32 v{G[nt]}, v{G[nt]}, v{t0}, s[58:59]')
        for m in range(4):
            for nt in range(3):
                d = v(accA[m][nt], 4)
                a(f'v_mfma_f32_16x16x32_bf16 {d}, {v(G[nt],4)}, {v(zf[m],4)}, {"0" if z_ == 0 else d}')
    T.mark()
    T.mark()
    a(f'''
    s_mul_i32 s5, s{sWV}, 10240
    s_add_u32 s5, s5, {PART}
    v_mul_u32_u24 v{t0}, 160, v{vi}
    v_lshl_add_u32 v{t0}, v{vg}, 4, v{t0}
    v_add_u32 v{t0}, s5, v{t0}
    ''')
    for m in range(4):
        for nt in range(2):
            a(f'ds_write_b128 v{t0}, {v(accA[m][nt],4)} offset:{16*m*160 + 64*nt}')
    a('s_mov_b32 exec_hi, 0')
    for m in range(4):
        a(f'ds_write_b128 v{t0}, {v(accA[m][2],4)} offset:{16*m*160 + 128}')
    a('s_mov_b64 exec, -1')
    hiA = V.hi
    a.label('K2_FIN')
    a.hist = []
    a('s_nop 3')
    V.release(base_mark)
    xr = [[V(2), V(2)] for _ in range(2)]
    vo = [V(), V()]; vd = [V(), V()]; va_ = [V(), V()]
    a('s_mov_b32 s8, 6554')
    a(f's_mul_i32 s5, s{sMB}, {2*1280}')
    a(f's_mul_i32 s6, s{sNB}, 80')
    a('s_add_u32 s5, s5, s6')
    for j in range(2):
        a(f'''
        v_add_u32 v{t0}, {512*j}, v0
        v_mul_u32_u24 v{t1}, s8, v{t0}
        v_lshrrev_b32 v{t1}, 16, v{t1}
        v_mul_u32_u24 v{t2}, 10, v{t1}
        v_sub_u32 v{t0}, v{t0}, v{t2}
        v_mul_u32_u24 v{vd[j]}, {PS}, v{t1}
        v_lshl_add_u32 v{vd[j]}, v{t0}, 4, v{vd[j]}
        v_mul_u32_u24 v{va_[j]}, 160, v{t1}
        v_lshl_add_u32 v{va_[j]}, v{t0}, 4, v{va_[j]}
        v_add_u32 v{va_[j]}, {PART}, v{va_[j]}
        v_and_b32 v{t2}, 31, v{t1}
        v_lshlrev_b32 v{t2}, 6, v{t2}
        v_lshrrev_b32 v{t1}, 5, v{t1}
        v_add_u32 v{t2}, v{t2}, v{t1}
        v_mul_u32_u24 v{t2}, 1280, v{t2}
        v_lshl_add_u32 v{t2}, v{t0}, 3, v{t2}
        v_add_u32 v{vo[j]}, s5, v{t2}
        ''')
        if j == 1:
            a(f'v_cmp_gt_u32 vcc, 128, v0')
            a(f'v_mov_b32 v{t0}, 0x7fffffff')
            a(f'v_cndmask_b32 v{vo[1]}, v{t0}, v{vo[1]}, vcc')
        for hh in range(2):
            a(f'buffer_load_dwordx2 {v(xr[j][hh],2)}, v{vo[j]}, s[{SX}:{SX+3}], 0 offen offset:{640*hh}')
    a('s_waitcnt lgkmcnt(0)')
    a('s_barrier')
    T.mark()
    pd = [[V(4) for _ in range(4)] for _ in range(2)]
    pa = [V(4) for _ in range(4)]
    vd2 = V()
    a('s_mov_b32 s9, 0xffff0000')
    NEG = 'neg_lo:[0,1] neg_hi:[0,1]'
    for j in range(2):
        if j == 1:
            a('s_cmp_ge_u32 s4, 2')
            a('s_cbranch_scc1 K2_DONE')
        a(f'v_add_u32 v{vd2}, {2*RING}, v{vd[j]}')
        for w in range(4):
            a(f'ds_read_b128 {v(pa[w],4)}, v{va_[j]} offset:{10240*w}')
        for hh in range(2):
            for w in range(4):
                a(f'ds_read_b128 {v(pd[hh][w],4)}, v{vd[j] if w < 2 else vd2} offset:{RING*(w%2) + 160*hh}')
        a('s_waitcnt lgkmcnt(8)')
        for r in range(4):
            a(f'v_add_f32 v{pa[0]+r}, v{pa[0]+r}, v{pa[1]+r}')
            a(f'v_add_f32 v{pa[2]+r}, v{pa[2]+r}, v{pa[3]+r}')
        for r in range(4):
            a(f'v_sub_f32 v{pa[1]+r}, v{pa[0]+r}, v{pa[2]+r}')
            a(f'v_add_f32 v{pa[0]+r}, v{pa[0]+r}, v{pa[2]+r}')
        a(f's_waitcnt vmcnt({2 if j == 0 else 2})')
        for hh in range(2):
            for r in range(4):
                src = xr[j][hh] + r // 2
                if r % 2 == 0: a(f'v_lshlrev_b32 v{pa[2]+r}, 16, v{src}')
                else: a(f'v_and_b32 v{pa[2]+r}, s9, v{src}')
            for r in range(4):
                a(f'v_add_f32 v{pa[hh]+r}, v{pa[hh]+r}, v{pa[2]+r}')
            a(f's_waitcnt lgkmcnt({4 if hh == 0 else 0})')
            for r in range(4):
                a(f'v_add_f32 v{pd[hh][0]+r}, v{pd[hh][0]+r}, v{pd[hh][1]+r}')
                a(f'v_add_f32 v{pd[hh][2]+r}, v{pd[hh][2]+r}, v{pd[hh][3]+r}')
            for r in range(4):
                a(f'v_add_f32 v{pd[hh][0]+r}, v{pd[hh][0]+r}, v{pd[hh][2]+r}')
                a(f'v_add_f32 v{pd[hh][0]+r}, v{pd[hh][0]+r}, v{pa[hh]+r}')
            a(f'v_cvt_pk_bf16_f32 v{pd[hh][1]}, v{pd[hh][0]}, v{pd[hh][0]+1}')
            a(f'v_cvt_pk_bf16_f32 v{pd[hh][1]+1}, v{pd[hh][0]+2}, v{pd[hh][0]+3}')
            a(f'buffer_store_dwordx2 {v(pd[hh][1],2)}, v{vo[j]}, s[{SO}:{SO+3}], 0 offen offset:{640*hh}')
    a.label('K2_DONE')
    T.mark()
    if T.n:
        a('s_waitcnt vmcnt(0)')
        T.mark()
        T.flush(t0, t1)
    a('s_endpgm')
    return max(hiD, hiA, V.hi, VT.hi), LDS, 512
```

```python
import os
ON = bool(os.environ.get('STAMP'))
T_OFF = 16 << 20
class Stamps:
    def __init__(self, a, region=0):
        self.a = a; self.n = 0; self.region = region
    def mark(self):
        if not ON: return
        assert self.n < 11
        self.a(f's_memtime s[{70 + 2 * self.n}:{71 + 2 * self.n}]')
        self.n += 1
    def flush(self, vt0, vt1):
        if not ON: return
        a = self.a
        a(f's_memrealtime s[92:93]')
        a(f's_waitcnt lgkmcnt(0)')
        a(f's_add_u32 s64, s34, {T_OFF + self.region * (1 << 20)}')
        a(f's_addc_u32 s65, s35, 0')
        a(f's_mov_b32 s66, 0x100000')
        a(f's_mov_b32 s67, 0x00020000')
        a(f's_lshl_b32 s68, s2, 3')
        a(f's_add_u32 s68, s68, s4')
        a(f's_lshl_b32 s68, s68, 7')
        a(f'v_mov_b32 v{vt1}, s68')
        for i in range(24):
            if i < 2 * self.n or i >= 22:
                a(f'v_mov_b32 v{vt0}, s{70 + i}')
                a(f'buffer_store_dword v{vt0}, v{vt1}, s[64:67], 0 offen offset:{4 * i}')
```

```python
import sys
from asm import *
import k1g

def kd(name, vgpr, sgpr=96):
    vg = (vgpr + 7) // 8 * 8
    return f'''.p2align 6
.amdhsa_kernel {name}
  .amdhsa_next_free_vgpr {vg}
  .amdhsa_next_free_sgpr {sgpr}
  .amdhsa_accum_offset {min(256, (vg + 3) // 4 * 4)}
  .amdhsa_group_segment_fixed_size 0
  .amdhsa_kernarg_size 80
  .amdhsa_user_sgpr_count 2
  .amdhsa_user_sgpr_kernarg_segment_ptr 1
  .amdhsa_system_sgpr_workgroup_id_x 1
.end_amdhsa_kernel
'''
def head(a, name):
    a.raw(f'.globl {name}\n.p2align 8\n.type {name},@function\n{name}:')
    a.hist = []

def prologue(a):
    a('''
    s_load_dwordx16 s[16:31], s[0:1], 0
    s_load_dwordx4 s[32:35], s[0:1], 64
    v_lshrrev_b32 v1, 6, v0
    s_nop 0
    v_readfirstlane_b32 s4, v1
    ''')

def build(mode):
    a = Asm()
    launches = []
    kds = []
    a.raw('.amdgcn_target "amdgcn-amd-amdhsa--gfx950"\n.text')
    head(a, 'k1_kernel')
    a('s_cmp_ge_u32 s2, 256')
    a('s_cbranch_scc1 K1_END')
    prologue(a)
    a('s_cmp_lt_u32 s2, 64')
    a('s_waitcnt lgkmcnt(0)')
    a('s_cbranch_scc1 K1_A')
    a('s_sub_u32 s3, s2, 64')
    hi = k1g.gen_g(a)
    a.label('K1_A')
    a.hist = []
    if mode >= 1:
        import k1a
        hi = max(hi, k1a.gen_a(a, merged=(mode >= 3)))
    a.label('K1_END')
    a('s_endpgm')
    launches.append('; @launch kernel=k1_kernel grid=(256,1,1) block=(512,1,1) lds=147456')
    kds.append(kd('k1_kernel', hi))
    if mode == 2:
        import k1a
        head(a, 'mid_kernel')
        a('s_cmp_ge_u32 s2, 41')
        a('s_cbranch_scc1 MID_END')
        prologue(a)
        a('s_waitcnt lgkmcnt(0)')
        hi = k1a.gen_mid_alone(a)
        a.label('MID_END')
        a('s_endpgm')
        launches.append('; @launch kernel=mid_kernel grid=(41,1,1) block=(512,1,1) lds=0')
        kds.append(kd('mid_kernel', hi))
    try:
        import k2
        have_k2 = mode >= 2 and len(sys.argv) > 3
    except ImportError:
        have_k2 = False
    if have_k2:
        head(a, 'k2_kernel')
        a('s_cmp_ge_u32 s2, 256')
        a('s_cbranch_scc1 K2_END')
        prologue(a)
        a('s_waitcnt lgkmcnt(0)')
        hi, lds, blk = k2.gen_k2(a)
        a.label('K2_END')
        a('s_endpgm')
        launches.append(f'; @launch kernel=k2_kernel grid=(256,1,1) block=({blk},1,1) lds={lds}')
        kds.append(kd('k2_kernel', hi))
    txt = '\n'.join(launches) + '\n' + a.text() + '.section .rodata,"a"\n' + ''.join(kds)
    return txt

if __name__ == '__main__':
    mode = int(sys.argv[1])
    open(sys.argv[2], 'w').write(build(mode))
```

```python
from asm import *
from stamp import Stamps
from k1g import srd, bf16r, ln_scalars, S_X, S_WR, S_WI, S_WS, S_DBG, S_WD, Y_OFF, U_OFF, KK
import os
X = os.environ.get('X', '')
N2S = 8 * KK * 16
QS = KK * 16
YBYTES = 64 * N2S
WD_OFF = 6291456
L_WF = 45056
L_WD = L_WF + 65536
L_S1 = L_WD + 40960

def allreduce16(a, r):
    for m in ('quad_perm:[1,0,3,2]', 'quad_perm:[2,3,0,1]', 'row_half_mirror', 'row_mirror'):
        a(f'v_add_f32_dpp v{r}, v{r}, v{r} {m} row_mask:0xf bank_mask:0xf')

def cheb(a, dst, cur, prev, M):
    a(f'v_pk_fma_f32 {v(dst,2)}, {v(cur,2)}, {v(M,2)}, {v(prev,2)} op_sel_hi:[1,0,1] neg_lo:[0,0,1] neg_hi:[0,0,1]')
def cheb_hi(a, dst, cur, prev, M):
    a(f'v_pk_fma_f32 {v(dst,2)}, {v(cur,2)}, {v(M,2)}, {v(prev,2)} op_sel:[0,1,0] op_sel_hi:[1,1,1] neg_lo:[0,0,1] neg_hi:[0,0,1]')

def gen_a(a, merged):
    V = VAlloc(1)
    T = Stamps(a)
    T.mark()
    SX, SY = 36, 40
    sN2, sPAR, sT0, sCNT = 52, 53, 54, 55
    RS = 336; SEQ = 32 * RS; SPEC = 4 * SEQ
    sc = ' sc1' if merged else ''
    srd(a, SX, S_X, 2048 * 1280)
    srd(a, SY, S_WS, YBYTES, Y_OFF)
    a(f'''
    s_and_b32 s5, s2, 7
    s_lshr_b32 s6, s2, 3
    s_lshl_b32 s5, s5, 3
    s_add_u32 s{sN2}, s5, s6
    s_lshr_b32 s{sPAR}, s4, 2
    ''')
    lane = V(); t0 = V(); t1 = V(); t2 = V(); vp = V(); vi = V(); vg = V(); vrow = V()
    raw = V(24, 4)
    ra, re_, rb, rc = raw, raw + 6, raw + 12, raw + 18
    a(f'''
    v_and_b32 v{lane}, 63, v0
    v_and_b32 v{vp}, 15, v0
    v_lshrrev_b32 v{vrow}, 4, v0
    v_lshlrev_b32 v{t0}, 6, v{vrow}
    v_add_u32 v{t0}, s{sN2}, v{t0}
    v_mul_u32_u24 v{t0}, 1280, v{t0}
    v_mul_u32_u24 v{t1}, 20, v{vp}
    v_add_u32 v{t2}, v{t0}, v{t1}
    v_sub_u32 v{t1}, v{t0}, v{t1}
    v_add_u32 v{t1}, 620, v{t1}
    buffer_load_dwordx4 {v(ra,4)}, v{t2}, s[{SX}:{SX+3}], 0 offen
    buffer_load_dword v{ra+4}, v{t2}, s[{SX}:{SX+3}], 0 offen offset:16
    buffer_load_dwordx4 {v(re_,4)}, v{t2}, s[{SX}:{SX+3}], 0 offen offset:640
    buffer_load_dword v{re_+4}, v{t2}, s[{SX}:{SX+3}], 0 offen offset:656
    buffer_load_dwordx4 {v(rb,4)}, v{t1}, s[{SX}:{SX+3}], 0 offen offset:640
    buffer_load_dwordx2 {v(rb+4,2)}, v{t1}, s[{SX}:{SX+3}], 0 offen offset:656
    buffer_load_dwordx4 {v(rc,4)}, v{t1}, s[{SX}:{SX+3}], 0 offen
    buffer_load_dwordx2 {v(rc+4,2)}, v{t1}, s[{SX}:{SX+3}], 0 offen offset:16
    v_lshrrev_b32 v{vg}, 4, v{lane}
    v_mov_b32 v{vi}, v{vp}
    ''')
    a(f'''
    s_lshl_b32 s5, s4, 2
    s_mov_b32 s6, 0x74208630
    s_lshr_b32 s6, s6, s5
    s_and_b32 s{sT0}, s6, 15
    s_lshr_b32 s6, 0xC3, s4
    s_and_b32 s{sCNT}, s6, 1
    ''')
    Bc = [[V(4) for _ in range(5)] for _ in range(3)]
    Bs = [[V(4) for _ in range(5)] for _ in range(3)]
    mk = V.mark()
    R0 = V(20, 2); R1 = V(20, 2); MM = V(2); kf = V(); gd = V(); ang = V(2)
    u0 = V(); u1 = V()
    a(f'''
    s_lshl_b32 s5, s4, 9
    s_and_b32 s5, s5, 0x400
    s_and_b32 s6, s4, 1
    s_lshl_b32 s7, s6, 7
    s_add_u32 s5, s5, s7
    s_add_u32 s5, s5, s{sN2}
    v_lshl_add_u32 v{t0}, v{vg}, 8, s5
    v_cvt_f32_u32 v{t0}, v{t0}
    s_lshl_b32 s5, s{sPAR}, 4
    v_add_u32 v{t1}, s5, v{vi}
    v_cvt_f32_u32 v{t1}, v{t1}
    v_mul_f32 v{u1}, {f32(1/2048)}, v{t1}
    v_mul_f32 v{ang}, v{u1}, v{t0}
    v_fmamk_f32 v{ang+1}, v{u1}, {f32(64.0)}, v{ang}
    v_cos_f32 v{R0}, v{ang}
    v_sin_f32 v{R0+1}, v{ang}
    v_cos_f32 v{R0+2}, v{ang+1}
    v_sin_f32 v{R0+3}, v{ang+1}
    s_lshr_b32 s5, s4, 1
    s_lshl_b32 s5, s5, 11
    s_lshl_b32 s6, s6, 3
    s_add_u32 s5, s5, s6
    s_add_u32 s5, s5, {L_S1}
    v_lshl_add_u32 v{u0}, v{lane}, 4, s5
    v_cvt_pk_bf16_f32 v{R1}, v{R0}, -v{R0+1}
    v_cvt_pk_bf16_f32 v{R1+1}, v{R0+2}, -v{R0+3}
    v_cvt_pk_bf16_f32 v{R1+2}, -v{R0+1}, -v{R0}
    v_cvt_pk_bf16_f32 v{R1+3}, -v{R0+3}, -v{R0+2}
    ds_write_b64 v{u0}, {v(R1,2)}
    ds_write_b64 v{u0}, {v(R1+2,2)} offset:1024
    s_waitcnt lgkmcnt(0)
    ''')
    a(f'v_mul_u32_u24 v{gd}, 10, v{vg}')
    a(f'v_cvt_f32_u32 v{gd}, v{gd}')
    def bgen(z):
        a(f'''
        s_add_u32 s5, s{sT0}, {z}
        s_lshl_b32 s5, s5, 5
        s_add_u32 s5, s5, s{sPAR}
        v_lshl_add_u32 v{kf}, v{vi}, 1, s5
        v_cvt_f32_u32 v{kf}, v{kf}
        v_mul_f32 v{kf}, {f32(1/640)}, v{kf}
        v_cos_f32 v{MM}, v{kf}
        v_mul_f32 v{ang}, {f32(40.0)}, v{kf}
        v_cos_f32 v{MM+1}, v{ang}
        v_pk_add_f32 {v(MM,2)}, {v(MM,2)}, {v(MM,2)}
        ''')
        rows = [R0, R1]
        for ks in range(2):
            R = rows[ks]
            for e in range(2):
                a(f'v_add_f32 v{ang+e}, {f32(40.0*ks + e)}, v{gd}')
                a(f'v_mul_f32 v{ang+e}, v{ang+e}, v{kf}')
                a(f'v_cos_f32 v{R+2*e}, v{ang+e}')
                a(f'v_sin_f32 v{R+2*e+1}, v{ang+e}')
        for e in range(2, 10):
            for ks in range(2):
                R = rows[ks]
                cheb(a, R + 2 * e, R + 2 * e - 2, R + 2 * e - 4, MM)
        for ks in range(4):
            R = rows[ks % 2]
            if ks >= 2:
                for e in range(10):
                    cheb_hi(a, R + 2 * e, rows[(ks + 1) % 2] + 2 * e, R + 2 * e, MM)
            for e in range(0, 10, 2):
                dc = Bc[z][ks] + e // 2 if e < 8 else Bc[z][4] + ks
                ds = Bs[z][ks] + e // 2 if e < 8 else Bs[z][4] + ks
                a(f'v_cvt_pk_bf16_f32 v{dc}, v{R+2*e}, v{R+2*e+2}')
                a(f'v_cvt_pk_bf16_f32 v{ds}, v{R+2*e+1}, v{R+2*e+3}')
    bgen(0); bgen(1)
    a(f's_cmp_eq_u32 s{sCNT}, 0')
    a('s_cbranch_scc1 A_SKIP_B2')
    bgen(2)
    a.label('A_SKIP_B2')
    a('s_nop 1')
    SR, SI, SWD = 44, 48, 60
    srd(a, SR, S_WR, 2048 * 642)
    srd(a, SI, S_WI, 2048 * 642)
    srd(a, SWD, S_WD, 1536 * 1280)
    a(f'''
    s_lshr_b32 s5, s2, 3
    s_lshl_b32 s5, s5, 2
    s_lshl_b32 s6, s4, 8
    s_add_u32 s5, s5, s6
    s_and_b32 s6, s2, 7
    s_mul_i32 s6, s6, 80
    v_bfe_u32 v{t0}, v{lane}, 3, 2
    v_lshrrev_b32 v{t1}, 5, v{lane}
    v_lshl_add_u32 v{t0}, v{t1}, 5, v{t0}
    v_add_u32 v{t0}, s5, v{t0}
    v_mul_u32_u24 v{t0}, 642, v{t0}
    v_add_u32 v{t0}, s6, v{t0}
    v_and_b32 v{t0}, -4, v{t0}
    v_lshrrev_b32 v{t1}, 3, v{lane}
    v_xor_b32 v{t1}, v{t1}, v{lane}
    v_and_b32 v{t1}, 7, v{t1}
    v_lshl_add_u32 v{t0}, v{t1}, 4, v{t0}
    v_cmp_gt_u32 vcc, 6, v{t1}
    v_mov_b32 v{t1}, 0x7fffffff
    v_cndmask_b32 v{t0}, v{t1}, v{t0}, vcc
    s_lshl_b32 s5, s4, 12
    ''')
    for n in range(4):
        a(f's_mov_b32 s6, {n * 64 * 642}')
        for ri, S_ in enumerate((SR, SI)):
            a(f's_add_u32 m0, s5, {L_WF + ri * 32768 + n * 1024}')
            a(f'buffer_load_dwordx4 v{t0}, s[{S_}:{S_+3}], s6 offen lds')
    a(f'''
    s_mul_i32 s5, s4, 5120
    s_mul_i32 s6, s2, 40960
    s_add_u32 s6, s6, s5
    v_lshlrev_b32 v{t1}, 4, v{lane}
    s_add_u32 m0, s5, {L_WD}
    ''')
    for n in range(4):
        a(f'buffer_load_dwordx4 v{t1}, s[{SWD}:{SWD+3}], s6 offen offset:{1024*n} lds')
    a(f's_add_u32 m0, s5, {L_WD + 4096}')
    a(f's_add_u32 s6, s6, 4096')
    a(f'buffer_load_dwordx4 v{t1}, s[{SWD}:{SWD+3}], s6 offen lds')
    T.mark()
    V.release(mk)
    xa = V(10, 2); xe = V(10, 2); xb = V(10, 2); xc = V(10, 2); xs = V(2)
    acc = V(2); mu = V(2); sMASK = 56
    a(f's_mov_b32 s{sMASK}, 0xffff0000')
    a('s_waitcnt vmcnt(13)')
    T.mark()
    def unp(dst, r, half):
        if half == 0: a(f'v_lshlrev_b32 v{dst}, 16, v{r}')
        else: a(f'v_and_b32 v{dst}, s{sMASK}, v{r}')
    for i in range(10):
        unp(xa + i, ra + i // 2, i % 2)
        unp(xe + i, re_ + i // 2, i % 2)
        t = 10 - i
        unp(xb + i, rb + t // 2, t % 2)
        unp(xc + i, rc + t // 2, t % 2)
    unp(xs, rb, 0); unp(xs + 1, rc, 0)
    a(f'v_cmp_eq_u32 s[58:59], 15, v{vp}')
    a(f'v_cmp_ne_u32 s[64:65], 0, v{vp}')
    a(f'v_cndmask_b32 v{xb}, 0, v{xb}, s[64:65]')
    a(f'v_cndmask_b32 v{xc}, 0, v{xc}, s[64:65]')
    tA = V(2); tB = V(2); sp = V(2); nq = V()
    out = [raw, raw + 6, raw + 12, raw + 18]
    for i in range(10):
        A_, B_, C_, E_ = xa+i, xb+i, xc+i, xe+i
        p = i % 2
        a(f'v_add_f32 v{tA+p}, v{A_}, v{B_}')
        a(f'v_sub_f32 v{A_}, v{A_}, v{B_}')
        a(f'v_add_f32 v{tB+p}, v{C_}, v{E_}')
        a(f'v_sub_f32 v{E_}, v{E_}, v{C_}')
        a(f'v_add_f32 v{B_}, v{tA+p}, v{tB+p}')
        a(f'v_sub_f32 v{C_}, v{tA+p}, v{tB+p}')
        a(f'v_add_f32 v{tA+p}, v{A_}, v{E_}')
        a(f'v_sub_f32 v{E_}, v{A_}, v{E_}')
        a(f'v_mov_b32 v{A_}, v{tA+p}') if False else None
        if i < 2: a(f'v_mov_b32 v{acc+p}, v{B_}')
        else: a(f'v_add_f32 v{acc+p}, v{acc+p}, v{B_}')
        a(f'v_mov_b32 v{A_}, v{tA+p}')
    a(f'''
    v_add_f32 v{sp}, v{xs}, v{xs+1}
    v_sub_f32 v{sp+1}, v{xs+1}, v{xs}
    v_cndmask_b32 v{sp}, 0, v{sp}, s[58:59]
    v_cndmask_b32 v{sp+1}, 0, v{sp+1}, s[58:59]
    v_add_f32 v{acc}, v{acc}, v{sp}
    v_sub_f32 v{nq}, v{acc}, v{acc+1}
    v_add_f32 v{acc}, v{acc}, v{acc+1}
    ''')
    allreduce16(a, acc)
    allreduce16(a, nq)
    a(f'''
    v_mul_f32 v{mu}, {f32(1/640)}, v{acc}
    v_mul_f32 v{tA}, 4.0, v{mu}
    v_add_f32 v{tA+1}, v{mu}, v{mu}
    v_cndmask_b32 v{tB}, v{tA+1}, v{tA}, s[64:65]
    v_cndmask_b32 v{tB+1}, v{tA+1}, 0, s[64:65]
    v_sub_f32 v{xb}, v{xb}, v{tB}
    v_sub_f32 v{xa}, v{xa}, v{tB+1}
    v_cndmask_b32 v{tB}, 0, v{tA+1}, s[58:59]
    v_sub_f32 v{sp}, v{sp}, v{tB}
    ''')
    for i in range(1, 10):
        a(f'v_sub_f32 v{xb+i}, v{xb+i}, v{tA}')
    a(f'v_mul_f32 v{acc}, v{sp}, v{sp}')
    a(f'v_mul_f32 v{acc+1}, v{sp+1}, v{sp+1}')
    a(f'v_add_f32 v{acc}, v{acc}, v{acc}')
    a(f'v_add_f32 v{acc+1}, v{acc+1}, v{acc+1}')
    a(f'v_mul_f32 v{tB}, v{xb}, v{xb}')
    a(f'v_mul_f32 v{tB+1}, v{xc}, v{xc}')
    accs = [acc, acc + 1, tB, tB + 1]
    n = 0
    for b in (xb, xc, xa, xe):
        for i in range(10):
            if i == 0 and b in (xb, xc): continue
            a(f'v_fmac_f32 v{accs[n % 4]}, v{b+i}, v{b+i}'); n += 1
    a(f'v_add_f32 v{acc}, v{acc}, v{acc+1}')
    a(f'v_add_f32 v{tB}, v{tB}, v{tB+1}')
    a(f'v_add_f32 v{acc}, v{acc}, v{tB}')
    allreduce16(a, acc)
    a(f'v_mul_f32 v{acc}, {f32(1/2560)}, v{acc}')
    rr = V(2)
    ln_scalars(a, mu, acc, mu + 1, rr, t0)
    a(f'v_mul_f32 v{rr}, {f32(2.0/(2048*640))}, v{rr}')
    a(f'v_sub_f32 v{mu}, v{mu}, v{mu+1}')
    a(f'v_mul_f32 v{mu}, v{mu}, v{rr}')
    a(f'v_mul_f32 v{rr+1}, 4.0, v{mu}')
    a(f'v_add_f32 v{mu}, v{mu}, v{mu}')
    a(f'v_cndmask_b32 v{tA}, v{mu}, v{rr+1}, s[64:65]')
    for i in range(10):
        a(f'v_fma_f32 v{xb+i}, v{xb+i}, v{rr}, v{tA if i == 0 else rr+1}')
        for b in (xc, xa, xe):
            a(f'v_mul_f32 v{b+i}, v{b+i}, v{rr}')
        if i % 2 == 1:
            for sq, src in enumerate((xb, xc, xa, xe)):
                a(f'v_cvt_pk_bf16_f32 v{out[sq] + i // 2}, v{src+i-1}, v{src+i}')
    a(f'''
    v_mul_u32_u24 v{t0}, {RS}, v{vrow}
    v_lshl_add_u32 v{t1}, v{vp}, 4, v{t0}
    v_and_b32 v{t2}, 3, v{vp}
    v_lshl_add_u32 v{t0}, v{t2}, 4, v{t0}
    v_lshrrev_b32 v{t2}, 2, v{vp}
    v_lshl_add_u32 v{t0}, v{t2}, 2, v{t0}
    ''')
    for sq in range(4):
        a(f'ds_write_b128 v{t1}, {v(out[sq],4)} offset:{sq*SEQ}')
        a(f'ds_write_b32 v{t0}, v{out[sq]+4} offset:{sq*SEQ + 256}')
    a(f'''
    v_mul_f32 v{nq}, v{nq}, v{rr}
    v_fma_f32 v{sp}, v{sp}, v{rr}, v{mu}
    v_mul_f32 v{sp+1}, v{sp+1}, v{rr}
    v_mov_b32 v{tB}, 0
    v_lshlrev_b32 v{t0}, 2, v{vrow}
    s_mov_b64 exec, s[58:59]
    ds_write_b32 v{t0}, v{sp} offset:{SPEC}
    ds_write_b32 v{t0}, v{sp+1} offset:{SPEC+128}
    ds_write_b32 v{t0}, v{tB} offset:{SPEC+256}
    ds_write_b32 v{t0}, v{nq} offset:{SPEC+384}
    s_mov_b64 exec, -1
    s_waitcnt lgkmcnt(0)
    s_barrier
    ''')
    T.mark()
    V.release(mk)
    P = [[V(4) for _ in range(2)] for _ in range(3)]
    Q = [[V(4) for _ in range(2)] for _ in range(3)]
    iP = P[2]; iQ = Q[2]
    FA = [raw + 4 * i for i in range(4)]
    FB = [raw + 16, raw + 20, V(4), V(4)]
    va = V(); vsg = V()
    Are = [[V(4) for _ in range(2)] for _ in range(2)]
    Aim = [[V(4) for _ in range(2)] for _ in range(2)]
    a(f'''
    s_mul_i32 s5, s{sPAR}, {SEQ}
    v_mul_u32_u24 v{va}, {RS}, v{vi}
    v_lshl_add_u32 v{va}, v{vg}, 4, v{va}
    v_add_u32 v{va}, s5, v{va}
    s_lshl_b32 s5, s{sPAR}, 8
    s_lshl_b32 s6, s{sPAR}, 7
    s_sub_u32 s6, 256, s6
    v_lshl_add_u32 v{t0}, v{vg}, 4, s5
    v_lshl_add_u32 v{t1}, v{vg}, 4, s6
    ''')
    for mt in range(2):
        a(f'ds_read_b128 {v(iP[mt],4)}, v{t0} offset:{SPEC + 64*mt}')
        a(f'ds_read_b128 {v(iQ[mt],4)}, v{t1} offset:{SPEC + 64*mt}')
    def rd(ks):
        F = FA if ks % 2 == 0 else FB
        for cs_ in range(2):
            for mt in range(2):
                a(f'ds_read_b128 {v(F[2*cs_+mt],4)}, v{va} offset:{2*cs_*SEQ + 16*mt*RS + 64*ks}')
    rd(0)
    a(f'v_lshlrev_b32 v{vsg}, 31, v{vi}')
    a('s_waitcnt lgkmcnt(4)')
    for mt in range(2):
        for r in range(4):
            a(f'v_xor_b32 v{iP[mt]+r}, v{vsg}, v{iP[mt]+r}')
            a(f'v_xor_b32 v{iQ[mt]+r}, v{vsg}, v{iQ[mt]+r}')
    for ks in range(5):
        F = FA if ks % 2 == 0 else FB
        if ks < 4:
            rd(ks + 1)
            a('s_waitcnt lgkmcnt(4)')
        else:
            a('s_waitcnt lgkmcnt(0)')
        for z in range(3):
            if z == 2:
                a(f's_cmp_eq_u32 s{sCNT}, 0')
                a(f's_cbranch_scc1 A_SKIP_M{ks}')
            for mt in range(2):
                c = v(iP[mt],4) if ks == 0 else v(P[z][mt],4)
                a(f'v_mfma_f32_16x16x32_bf16 {v(P[z][mt],4)}, {v(F[mt],4)}, {v(Bc[z][ks],4)}, {c}')
                c = v(iQ[mt],4) if ks == 0 else v(Q[z][mt],4)
                a(f'v_mfma_f32_16x16x32_bf16 {v(Q[z][mt],4)}, {v(F[2+mt],4)}, {v(Bs[z][ks],4)}, {c}')
        a.label(f'A_SKIP_M{ks}')
        for ins in a.hist[-4:]: ins.states = 0
    T.mark()
    vy = V()
    a(f'v_lshlrev_b32 v{t0}, 4, v{lane}')
    a(f'v_add_u32 v{t0}, {L_S1}, v{t0}')
    for kt in range(2):
        for mt in range(2):
            a(f'ds_read_b128 {v(Are[kt][mt],4)}, v{t0} offset:{(2*kt+mt)*2048}')
            a(f'ds_read_b128 {v(Aim[kt][mt],4)}, v{t0} offset:{(2*kt+mt)*2048 + 1024}')
    a(f'''
    s_mul_i32 s5, s{sN2}, {N2S}
    s_mul_i32 s6, s{sPAR}, {164*16}
    s_add_u32 s5, s5, s6
    s_lshl_b32 s6, s{sT0}, 8
    s_add_u32 s5, s5, s6
    v_mul_u32_u24 v{vy}, {QS}, v{vg}
    v_lshl_add_u32 v{vy}, v{vi}, 4, v{vy}
    v_add_u32 v{vy}, s5, v{vy}
    s_mov_b32 s7, {4*QS}
    ''')
    def step1(z, Bq, Yr, Yi, O, store):
        for kt in range(2):
            for mt in range(2):
                c = '0' if mt == 0 else v(Yr[kt],4)
                a(f'v_mfma_f32_16x16x32_bf16 {v(Yr[kt],4)}, {v(Are[kt][mt],4)}, {v(Bq[mt],4)}, {c}')
                c = '0' if mt == 0 else v(Yi[kt],4)
                a(f'v_mfma_f32_16x16x32_bf16 {v(Yi[kt],4)}, {v(Aim[kt][mt],4)}, {v(Bq[mt],4)}, {c}')
    def fin(z, Yr, Yi, O, va_, off):
        for kt in range(2):
            for r in range(4):
                a(f'v_cvt_pk_bf16_f32 v{O[kt]+r}, v{Yr[kt]+r}, v{Yi[kt]+r}')
            so = '0' if kt == 0 else 's7'
            a(f'buffer_store_dwordx4 {v(O[kt],4)}, v{va_}, s[{SY}:{SY+3}], {so} offen offset:{off}{sc}')
    def regs_for(z):
        return ([Bc[z][0], Bc[z][1]], [Bc[z][2], Bc[z][3]], [Bs[z][0], Bs[z][1]], [Bs[z][2], Bs[z][3]])
    def pack(z):
        Bq = regs_for(z)[0]
        for mt in range(2):
            for r in range(4):
                a(f'v_cvt_pk_bf16_f32 v{Bq[mt]+r}, v{P[z][mt]+r}, v{Q[z][mt]+r}')
    a('s_nop 7')
    for z in range(2):
        pack(z)
    a('s_waitcnt lgkmcnt(0)')
    for z in range(2):
        Bq, Yr, Yi, O = regs_for(z)
        step1(z, Bq, Yr, Yi, O, None)
    Bq, Yr, Yi, O = regs_for(2)
    a(f's_cmp_eq_u32 s{sCNT}, 0')
    a('s_cbranch_scc1 A_S1_NOT3')
    pack(2)
    a(f'v_add_u32 v{t2}, 512, v{vy}')
    a('s_branch A_S1_DO3')
    a.label('A_S1_NOT3')
    a('s_cmp_eq_u32 s4, 2')
    a('s_cbranch_scc0 A_S1_NO3')
    a(f'v_lshlrev_b32 v{t0}, 4, v{vg}')
    for mt in range(2):
        a(f'ds_read_b128 {v(Yr[mt],4)}, v{t0} offset:{SPEC + 384 + 64*mt}')
    a(f'v_add_u32 v{t2}, {(160 - 96) * 16}, v{vy}')
    a(f'v_cmp_gt_u32 vcc, 4, v{vi}')
    a(f'v_mov_b32 v{t1}, 0x7fffffff')
    a(f'v_cndmask_b32 v{t2}, v{t1}, v{t2}, vcc')
    a('s_waitcnt lgkmcnt(0)')
    for mt in range(2):
        for r in range(4):
            a(f'v_cvt_pk_bf16_f32 v{Bq[mt]+r}, v{Yr[mt]+r}, 0')
    a.label('A_S1_DO3')
    a('s_nop 2')
    step1(2, Bq, Yr, Yi, O, None)
    fin(2, Yr, Yi, O, t2, 0)
    a.label('A_S1_NO3')
    a('s_nop 7')
    for z in range(2):
        Bq, Yr, Yi, O = regs_for(z)
        fin(z, Yr, Yi, O, vy, 256 * z)
    T.mark()
    hi = V.hi
    hi = max(hi, gen_mid(a, T))
    return hi

def gen_mid(a, T):
    V = VAlloc(1)
    SY, SU, SD, SWO = 36, 40, 60, 44
    lane = V(); t0 = V(); t1 = V(); t2 = V(); vi = V(); vg = V(); vy = V()
    srd(a, SD, S_DBG, 256)
    a(f'''
    s_waitcnt vmcnt(0)
    s_barrier
    v_mov_b32 v{t0}, 1
    v_mov_b32 v{t1}, 0
    s_cmp_eq_u32 s4, 0
    s_cbranch_scc0 M_NOSIG
    s_mov_b64 exec, 1
    buffer_atomic_add v{t0}, v{t1}, s[{SD}:{SD+3}], 0 offen sc1
    s_mov_b64 exec, -1
    ''')
    a.label('M_NOSIG')
    T.mark()
    a(f'''
    v_and_b32 v{lane}, 63, v0
    v_and_b32 v{vi}, 15, v{lane}
    v_lshrrev_b32 v{vg}, 4, v{lane}
    ''')
    mk = V.mark()
    fr = [V(4) for _ in range(5)]
    srd(a, SWO, S_WS, 1536 * 1280, WD_OFF)
    a(f'''
    s_cmp_ge_u32 s2, 48
    s_cbranch_scc1 M_NOWD
    v_lshrrev_b32 v{t0}, 5, v{lane}
    v_lshlrev_b32 v{t0}, 4, v{t0}
    v_bfe_u32 v{t1}, v{lane}, 4, 1
    v_lshl_add_u32 v{t0}, v{t1}, 2, v{t0}
    v_bfe_u32 v{t1}, v{lane}, 2, 2
    v_add_u32 v{t0}, v{t0}, v{t1}
    v_mul_u32_u24 v{t0}, 1280, v{t0}
    v_and_b32 v{t1}, 3, v{lane}
    v_lshl_add_u32 v{t0}, v{t1}, 3, v{t0}
    s_mul_i32 s5, s4, 80
    s_add_u32 s5, s5, {L_WD}
    v_add_u32 v{t0}, s5, v{t0}
    v_lshrrev_b32 v{t1}, 1, v{t1}
    v_mul_u32_u24 v{t1}, 560, v{t1}
    v_add_u32 v{t1}, v{t1}, v{t0}
    s_mul_i32 s5, s4, {48*5120}
    s_mul_i32 s6, s2, 5120
    s_add_u32 s5, s5, s6
    s_add_u32 s6, s5, 4096
    v_lshlrev_b32 v{t2}, 4, v{lane}
    ''')
    for nt in range(5):
        for j in range(2):
            ad = t1 if nt == 2 else t0
            off = 32 * nt + (560 if nt > 2 else 0) + 10240 * j
            a(f'ds_read_b64_tr_b16 {v(fr[nt] + 2*j, 2)}, v{ad} offset:{off}')
    for nt in range(5):
        a(f's_waitcnt lgkmcnt({8 - 2*nt})')
        if nt < 4:
            a(f'buffer_store_dwordx4 {v(fr[nt],4)}, v{t2}, s[{SWO}:{SWO+3}], s5 offen offset:{1024*nt}')
        else:
            a(f'buffer_store_dwordx4 {v(fr[nt],4)}, v{t2}, s[{SWO}:{SWO+3}], s6 offen')
    a.label('M_NOWD')
    a('s_nop 1')
    V.release(mk)
    a(f'''
    s_and_b32 s6, s2, 7
    s_cmp_eq_u32 s6, 7
    s_cselect_b32 s7, 6, 5
    s_cmp_ge_u32 s4, s7
    s_cbranch_scc1 M_IDLE
    ''')
    srd(a, SY, S_WS, YBYTES, Y_OFF)
    srd(a, SU, S_WS, YBYTES, U_OFF)
    a(f'''
    s_mul_i32 s6, s6, 5
    s_add_u32 s6, s6, s4
    s_lshl_b32 s6, s6, 6
    s_lshr_b32 s5, s2, 3
    s_mul_i32 s5, s5, {QS}
    s_add_u32 s6, s6, s5
    s_mov_b32 s5, {4*N2S}
    v_mul_lo_u32 v{vy}, v{vg}, s5
    v_lshl_add_u32 v{vy}, v{vi}, 2, v{vy}
    v_add_u32 v{vy}, s6, v{vy}
    ''')
    Wf = [[[[V(4) for _ in range(2)] for _ in range(2)] for _ in range(2)] for _ in range(2)]
    aw = [[V(), V()], [V(), V()]]
    for r in range(Wf[0][0][0][0], Wf[0][0][0][0] + 64):
        a(f'v_mov_b32 v{r}, 0')
    k1i = V()
    a(f'''
    v_and_b32 v{k1i}, 3, v{vi}
    v_and_b32 v{t0}, 1, v{vi}
    v_lshlrev_b32 v{t0}, 1, v{t0}
    v_and_b32 v{t1}, 12, v{vi}
    s_lshl_b32 s5, s4, 4
    v_add3_u32 v{t0}, v{t0}, v{t1}, s5
    v_lshl_add_u32 v{t2}, v{vg}, 4, v{k1i}
    v_lshlrev_b32 v{t2}, 7, v{t2}
    v_add_u32 v{t2}, {L_WF}, v{t2}
    v_lshlrev_b32 v{k1i}, 4, v{k1i}
    ''')
    for Tl in range(2):
        if Tl: a(f'v_add_u32 v{t0}, 2, v{t0}')
        a(f'v_xor_b32 v{t1}, v{t0}, v{k1i}')
        a(f'v_add_u32 v{aw[Tl][0]}, v{t1}, v{t2}')
        a(f'v_xor_b32 v{t1}, 64, v{t1}')
        a(f'v_add_u32 v{aw[Tl][1]}, v{t1}, v{t2}')
    n = 0
    for Tl in range(2):
        for ri in range(2):
            for half in range(2):
                for kt in range(2):
                    for r in range(4):
                        a(f'ds_read_u16_d16_hi v{Wf[Tl][ri][half][kt]+r}, v{aw[Tl][r%2]} offset:{(16*kt + r + 32*half)*512 + 32768*ri}')
    Yd = [[[V(4) for _ in range(2)] for _ in range(2)] for _ in range(2)]
    def yloads():
        n = 0
        for Tl in range(2):
            for par2 in range(2):
                for ks in range(2):
                    for r in range(4):
                        sr = 54 + n % 4; n += 1
                        a(f's_mov_b32 s{sr}, {(32*ks + 16*(r//2) + 2*(r%2) + par2) * N2S}')
                        a(f'buffer_load_dword v{Yd[Tl][par2][ks]+r}, v{vy}, s[{SY}:{SY+3}], s{sr} offen offset:{164*16*Tl} sc1')
    Are = [[[V(4) for _ in range(2)] for _ in range(2)] for _ in range(2)]
    Aim = [[[V(4) for _ in range(2)] for _ in range(2)] for _ in range(2)]
    acc = [[[[V(4) for _ in range(2)] for _ in range(2)] for _ in range(2)] for _ in range(2)]
    tmp = acc[0][0][0][0]
    u0 = V(); u1 = V(); ang = V(2); vsg = V()
    a(f'v_lshlrev_b32 v{t0}, 2, v{vg}')
    a(f'v_cvt_f32_u32 v{t0}, v{t0}')
    a(f'v_and_b32 v{vsg}, 1, v{vi}')
    a(f'v_mul_u32_u24 v{vsg}, 0x8000, v{vsg}')
    a(f'v_lshl_or_b32 v{vsg}, v{vsg}, 16, v{vsg}')
    for kt in range(2):
        a(f'v_add_u32 v{t1}, {16*kt}, v{vi}')
        a(f'v_cvt_f32_u32 v{t1}, v{t1}')
        a(f'v_mul_f32 v{u1}, {f32(1/64)}, v{t1}')
        a(f'v_mul_f32 v{u0}, v{u1}, v{t0}')
        for par2 in range(2):
            for r in range(4):
                p = tmp + 2 * r
                a(f'v_fmamk_f32 v{ang + r % 2}, v{u1}, {f32(16*(r//2) + 2*(r%2) + par2)}, v{u0}')
                a(f'v_cos_f32 v{p}, v{ang + r % 2}')
                a(f'v_sin_f32 v{p+1}, v{ang + r % 2}')
            for r in range(4):
                p = tmp + 2 * r
                a(f'v_cvt_pk_bf16_f32 v{Are[kt][par2][0]+r}, v{p}, v{p+1}')
                a(f'v_cvt_pk_bf16_f32 v{Aim[kt][par2][0]+r}, -v{p+1}, v{p}')
                a(f'v_xor_b32 v{Are[kt][par2][1]+r}, v{vsg}, v{Are[kt][par2][0]+r}')
                a(f'v_xor_b32 v{Aim[kt][par2][1]+r}, v{vsg}, v{Aim[kt][par2][0]+r}')
    a('s_barrier')
    T.mark()
    yloads()
    NEG = 'neg_lo:[0,1] neg_hi:[0,1]'
    def dft(Tl, D):
        for ks in range(2):
            for par2 in range(2):
                for kt in range(2):
                    for c_, M in enumerate((Are, Aim)):
                        d = v(acc[Tl][par2][kt][c_], 4)
                        a(f'v_mfma_f32_16x16x32_bf16 {d}, {v(M[kt][par2][ks],4)}, {v(D[par2][ks],4)}, {"0" if ks == 0 else d}')
    tz = [V(2), V(2), V(2), V(2)]
    def filt(Tl):
        for kt in range(2):
            for r in (0, 2):
                Er = v(acc[Tl][0][kt][0] + r, 2); Or = v(acc[Tl][1][kt][0] + r, 2)
                Ei = v(acc[Tl][0][kt][1] + r, 2); Oi = v(acc[Tl][1][kt][1] + r, 2)
                a(f'v_pk_add_f32 {v(tz[0],2)}, {Er}, {Or}')
                a(f'v_pk_add_f32 {v(tz[1],2)}, {Ei}, {Oi}')
                a(f'v_pk_add_f32 {Er}, {Er}, {Or} {NEG}')
                a(f'v_pk_add_f32 {Ei}, {Ei}, {Oi} {NEG}')
                for half, (xr, xi) in enumerate(((v(tz[0],2), v(tz[1],2)), (Er, Ei))):
                    wr = v(Wf[Tl][0][half][kt] + r, 2); wi = v(Wf[Tl][1][half][kt] + r, 2)
                    zr, zi = (Or, Oi) if half == 0 else (v(tz[2],2), v(tz[3],2))
                    a(f'v_pk_mul_f32 {zr}, {xr}, {wr}')
                    a(f'v_pk_mul_f32 {zi}, {xr}, {wi}')
                    a(f'v_pk_fma_f32 {zr}, {xi}, {wi}, {zr} neg_lo:[1,0,0] neg_hi:[1,0,0]')
                    a(f'v_pk_fma_f32 {zi}, {xi}, {wr}, {zi}')
                    zr0 = acc[Tl][1][kt][0] + r if half == 0 else tz[2]
                    zi0 = acc[Tl][1][kt][1] + r if half == 0 else tz[3]
                    for par2 in range(2):
                        a(f'v_cvt_pk_bf16_f32 v{Yd[Tl][par2][half] + 2*kt + r//2}, v{zr0+par2}, -v{zi0+par2}')
    def fin(Tl):
        n = 0
        for nt in range(2):
            for r in (0, 2):
                Er = v(acc[Tl][0][nt][0] + r, 2); Or = v(acc[Tl][1][nt][0] + r, 2)
                Ei = v(acc[Tl][0][nt][1] + r, 2); Oi = v(acc[Tl][1][nt][1] + r, 2)
                a(f'v_pk_add_f32 {v(tz[0],2)}, {Er}, {Or}')
                a(f'v_pk_add_f32 {v(tz[1],2)}, {Ei}, {Oi}')
                a(f'v_pk_add_f32 {Er}, {Er}, {Or} {NEG}')
                a(f'v_pk_add_f32 {Ei}, {Ei}, {Oi} {NEG}')
                for half in range(2):
                    for j in range(2):
                        ur = (tz[0] if half == 0 else acc[Tl][0][nt][0] + r) + j
                        ui = (tz[1] if half == 0 else acc[Tl][0][nt][1] + r) + j
                        o = acc[Tl][1][nt][half] + r + j
                        a(f'v_cvt_pk_bf16_f32 v{o}, v{ur}, -v{ui}')
                        sr = 54 + n % 4; n += 1
                        a(f's_mov_b32 s{sr}, {(16*nt + r + j + 32*half) * N2S}')
                        a(f'buffer_store_dword v{o}, v{vy}, s[{SU}:{SU+3}], s{sr} offen offset:{164*16*Tl}')
    a('s_waitcnt vmcnt(16) lgkmcnt(0)')
    T.mark()
    dft(0, Yd[0])
    a('s_waitcnt vmcnt(0)')
    dft(1, Yd[1])
    filt(0)
    dft(0, Yd[0])
    filt(1)
    dft(1, Yd[1])
    fin(0)
    fin(1)
    if T.n:
        a('s_waitcnt vmcnt(0)')
        T.mark()
        T.flush(t0, t1)
    a('s_endpgm')
    a.label('M_IDLE')
    a.hist = []
    a('s_cmp_eq_u32 s4, 7')
    a('s_cbranch_scc0 M_POLLED')
    a(f'v_mov_b32 v{t1}, 0')
    a.label('M_POLL')
    a(f'buffer_load_dword v{t0}, v{t1}, s[{SD}:{SD+3}], 0 offen sc1')
    a('s_waitcnt vmcnt(0)')
    a(f'v_readfirstlane_b32 s5, v{t0}')
    a('s_nop 3')
    a('s_cmp_ge_u32 s5, 64')
    a('s_cbranch_scc1 M_POLLED')
    a('s_sleep 1')
    a('s_branch M_POLL')
    a.label('M_POLLED')
    a('s_barrier')
    a('s_endpgm')
    return V.hi
```

```python
from asm import *
from stamp import Stamps
import os
X = os.environ.get('X', '')

H_OFF, Y_OFF, U_OFF = 0, 8 << 20, 12 << 20
KK = 328
ONES = 0x3F803F80

S_X, S_WR, S_WI, S_WG, S_WU, S_WD, S_OUT, S_DBG, S_WS = 16, 18, 20, 24, 26, 28, 30, 32, 34

def srd(a, d, base, nbytes, off=0):
    if off:
        a(f's_add_u32 s{d}, s{base}, {off}')
        a(f's_addc_u32 s{d+1}, s{base+1}, 0')
    else:
        a(f's_mov_b32 s{d}, s{base}')
        a(f's_mov_b32 s{d+1}, s{base+1}')
    a(f's_mov_b32 s{d+2}, {nbytes}')
    a(f's_mov_b32 s{d+3}, 0x00020000')

def bf16r(a, d, x):
    a(f'v_cvt_pk_bf16_f32 v{d}, v{x}, v{x}')
    a(f'v_and_b32 v{d}, 0xffff0000, v{d}')

def ln_scalars(a, vsum, vsq_or_var, vmb, vr, t0, two_pass=False):
    bf16r(a, vmb, vsum)
    bf16r(a, t0, vsq_or_var)
    a(f'v_add_f32 v{t0}, {f32(1e-5)}, v{t0}')
    bf16r(a, t0, t0)
    a(f'v_sqrt_f32 v{t0}, v{t0}')
    bf16r(a, t0, t0)
    a(f'v_rcp_f32 v{vr}, v{t0}')

class VM:
    def __init__(self): self.ops = []
    def issue(self, tag): self.ops.append(tag)
    def wait(self, tags):
        last = max([i for i, t in enumerate(self.ops) if t in tags], default=-1)
        return min(63, len(self.ops) - 1 - last)

def gen_g(a, NST=20):
    V = VAlloc(1)
    T = Stamps(a)
    T.mark()
    SX, SG, SU, SH, SP = 36, 40, 44, 48, 64
    sMB, sNB, sM0, sOA, sOW, sT, sWM, sWN, sONE, sM0X = 52, 53, 54, 55, 56, 57, 58, 59, 60, 61
    WB = 65536
    vm = VM()
    PFST = 4 if 'pf4' in X else 1
    srd(a, SX, S_X, 2048 * 1280)
    srd(a, SG, S_WG, 640 * 3072)
    srd(a, SU, S_WU, 640 * 3072)
    a(f"""
    s_and_b32 s5, s3, 7
    s_lshr_b32 s6, s3, 3
    s_lshr_b32 s7, s5, 2
    s_lshl_b32 s7, s7, 3
    s_and_b32 s8, s6, 7
    s_add_u32 s{sMB}, s7, s8
    s_and_b32 s7, s5, 3
    s_mul_i32 s7, s7, 3
    s_lshr_b32 s8, s6, 3
    s_add_u32 s{sNB}, s7, s8
    s_lshr_b32 s{sWM}, s4, 2
    s_and_b32 s{sWN}, s4, 3
    s_lshl_b32 s{sM0}, s4, 10
    s_lshl_b32 s{sM0X}, s4, 11
    s_mov_b32 s{sOA}, 0
    s_mov_b32 s{sOW}, 0
    """)
    lane = V(); t0 = V(); t1 = V(); t2 = V(); vA = [V(), V()]; vW = V()
    a(f'v_and_b32 v{lane}, 63, v0')
    a(f"""
    s_and_b32 s5, s4, 1
    s_lshl_b32 s5, s5, 10
    s_lshl_b32 s6, s{sMB}, 2
    s_add_u32 s5, s5, s6
    s_lshr_b32 s6, s4, 1
    s_add_u32 s5, s5, s6
    s_mul_i32 s5, s5, 1280
    s_mov_b32 s6, {64*1280}
    v_lshrrev_b32 v{t0}, 3, v{lane}
    v_mul_lo_u32 v{t0}, v{t0}, s6
    v_and_b32 v{t1}, 7, v{lane}
    v_lshrrev_b32 v{t2}, 4, v{lane}
    v_xor_b32 v{t1}, v{t1}, v{t2}
    v_lshlrev_b32 v{t1}, 4, v{t1}
    v_add3_u32 v{vA[0]}, v{t0}, v{t1}, s5
    v_xor_b32 v{t1}, 64, v{t1}
    s_add_u32 s5, s5, {512*1280}
    v_add3_u32 v{vA[1]}, v{t0}, v{t1}, s5
    s_mul_i32 s5, s4, {4*3072}
    s_lshl_b32 s6, s{sNB}, 8
    s_add_u32 s5, s5, s6
    v_mul_u32_u24 v{t0}, 3072, v{t2}
    v_lshlrev_b32 v{t1}, 2, v{t2}
    v_and_b32 v{vW}, 15, v{lane}
    v_xor_b32 v{t1}, v{t1}, v{vW}
    v_lshlrev_b32 v{t1}, 4, v{t1}
    v_add3_u32 v{vW}, v{t0}, v{t1}, s5
    """)
    def dma_x(xi):
        c, j = xi // 2, xi % 2
        L = [f's_add_u32 m0, s{sM0X}, {(c % 4) * 16384 + 1024 * j}', ('x', c, f'buffer_load_dwordx4 v{vA[j]}, s[{SX}:{SX+3}], s{sOA} offen lds')]
        if j == 1: L.append(f's_add_u32 s{sOA}, s{sOA}, 128')
        return L
    def dma_w(st, m):
        b = WB + (st % 6) * 16384 + 8192 * m
        S_ = (SG, SU)[m]
        L = [f's_add_u32 m0, s{sM0}, {b}', ('w', st, f'buffer_load_dwordx4 v{vW}, s[{S_}:{S_+3}], s{sOW} offen lds')]
        if m == 1: L.append(f's_add_u32 s{sOW}, s{sOW}, {32*3072}')
        return L
    def emit(L):
        for q in L:
            if isinstance(q, tuple):
                vm.issue(q[:2]); a(q[2])
            else: a(q)
    for st in range(5):
        if st % 2 == 0:
            emit(dma_x(st)); emit(dma_x(st + 1))
        emit(dma_w(st, 0)); emit(dma_w(st, 1))
        if st == PFST and 'nopf' not in X:
            pf = V(); pd = V()
            a(f"""
            s_lshr_b32 s6, s3, 3
            s_lshl_b32 s6, s6, 3
            s_add_u32 s6, s6, s4
            s_cmp_ge_u32 s6, 96
            s_cbranch_scc1 G_PFW
            s_lshr_b32 s7, s6, 4
            s_lshl_b32 s7, s7, 7
            s_and_b32 s8, s6, 15
            s_mul_i32 s8, s8, 163840
            s_add_u32 s7, s7, s8
            s_bfe_u32 s8, s3, 0x10002
            s_mul_i32 s8, s8, 40960
            s_add_u32 s7, s7, s8
            s_add_u32 s7, s7, 512
            v_and_b32 v{t0}, 31, v{lane}
            v_mul_u32_u24 v{pf}, 1280, v{t0}
            v_lshrrev_b32 v{t0}, 5, v{lane}
            v_mul_u32_u24 v{t0}, 81920, v{t0}
            v_add_u32 v{pf}, v{pf}, v{t0}
            s_mov_b64 s[{SP}:{SP+1}], s[{SX}:{SX+1}]
            s_mov_b32 s{SP+2}, {2048*1280}
            s_branch G_PFGO
            """)
            a.label('G_PFW')
            a(f"""
            s_sub_u32 s6, s6, 96
            s_bitcmp1_b32 s6, 0
            s_cselect_b32 s{SP}, s{SU}, s{SG}
            s_cselect_b32 s{SP+1}, s{SU+1}, s{SG+1}
            s_mov_b32 s{SP+2}, {640*3072}
            s_lshr_b32 s6, s6, 1
            s_lshl_b32 s6, s6, 6
            v_add_u32 v{t0}, s6, v{lane}
            s_mov_b32 s7, 43691
            v_mul_u32_u24 v{t1}, s7, v{t0}
            v_lshrrev_b32 v{t1}, 18, v{t1}
            v_mul_u32_u24 v{pf}, 6, v{t1}
            v_sub_u32 v{t0}, v{t0}, v{pf}
            v_mul_u32_u24 v{t1}, 3072, v{t1}
            v_lshl_add_u32 v{pf}, v{t0}, 7, v{t1}
            s_and_b32 s7, s3, 3
            s_mul_i32 s7, s7, 768
            s_add_u32 s7, s7, {160*3072}
            """)
            a.label('G_PFGO')
            a(f's_mov_b32 s{SP+3}, 0x00020000')
            emit([('p', 0, f'buffer_load_dword v{pd}, v{pf}, s[{SP}:{SP+3}], s7 offen')])
    srd(a, SH, S_WS, 2048 * 3072, H_OFF)
    ax = [[V() for _ in range(4)] for _ in range(2)]
    aw = [[[V() for _ in range(2)] for _ in range(2)] for _ in range(2)]
    h = V(); l32 = V()
    a(f"""
    v_lshrrev_b32 v{h}, 5, v{lane}
    v_and_b32 v{l32}, 31, v{lane}
    v_bfe_u32 v{t0}, v{lane}, 1, 3
    v_xor_b32 v{t0}, v{t0}, v{h}
    s_and_b32 s5, s{sWN}, 2
    v_xor_b32 v{t0}, s5, v{t0}
    v_lshlrev_b32 v{t0}, 4, v{t0}
    v_lshl_add_u32 v{t0}, v{l32}, 7, v{t0}
    s_lshl_b32 s5, s{sWM}, 13
    s_and_b32 s6, s{sWN}, 1
    s_lshl_b32 s6, s6, 12
    s_add_u32 s5, s5, s6
    v_add_u32 v{ax[0][0]}, s5, v{t0}
    v_xor_b32 v{ax[0][1]}, 32, v{ax[0][0]}
    v_xor_b32 v{ax[0][2]}, 64, v{ax[0][0]}
    v_xor_b32 v{ax[0][3]}, 0x60, v{ax[0][0]}
    """)
    for i in range(4):
        a(f'v_xor_b32 v{ax[1][i]}, 0x1000, v{ax[0][i]}')
    a(f"""
    v_bfe_u32 v{t0}, v{lane}, 2, 2
    v_lshl_add_u32 v{t1}, v{h}, 3, v{t0}
    v_lshlrev_b32 v{t1}, 8, v{t1}
    v_xor_b32 v{t0}, s{sWN}, v{t0}
    v_lshl_add_u32 v{t1}, v{t0}, 6, v{t1}
    v_bfe_u32 v{t0}, v{lane}, 4, 1
    v_lshl_add_u32 v{t1}, v{t0}, 5, v{t1}
    v_and_b32 v{t0}, 3, v{lane}
    v_lshl_add_u32 v{t1}, v{t0}, 3, v{t1}
    s_lshr_b32 s5, s{sWN}, 1
    s_lshl_b32 s5, s5, 12
    s_lshl_b32 s6, s{sWM}, 13
    s_add_u32 s5, s5, s6
    s_add_u32 s5, s5, {WB}
    v_add_u32 v{aw[0][0][0]}, s5, v{t1}
    v_xor_b32 v{aw[0][1][0]}, 0x2000, v{aw[0][0][0]}
    v_xor_b32 v{aw[0][0][1]}, 0x1000, v{aw[0][0][0]}
    v_xor_b32 v{aw[0][1][1]}, 0x1000, v{aw[0][1][0]}
    """)
    for i in range(2):
        for j in range(2):
            a(f'v_add_u32 v{aw[1][i][j]}, {3*16384}, v{aw[0][i][j]}')
    acc = [[V(16, 4) for _ in range(2)] for _ in range(2)]
    fx = [[V(4) for _ in range(2)] for _ in range(2)]
    fw = [[V(4) for _ in range(2)] for _ in range(2)]
    vsum = V(2); vsq = V(2); tp = [V(2), V(2)]; sMASK = sONE
    vcs = V(4); sel = V(4)
    a(f's_mov_b32 s{sMASK}, 0xffff0000')
    for r in (vsum, vsq):
        a(f'v_mov_b32 v{r}, 0\n v_mov_b32 v{r+1}, 0')
    a(f"""
    v_lshrrev_b32 v{t0}, 4, v{lane}
    v_xor_b32 v{t0}, v{t0}, v{lane}
    v_and_b32 v{t0}, 1, v{t0}
    v_cmp_eq_u32 vcc, 0, v{t0}
    v_mov_b32 v{t1}, {ONES}
    v_cndmask_b32 v{sel}, 0, v{t1}, vcc
    v_mov_b32 v{sel+1}, v{sel}
    v_mov_b32 v{sel+2}, v{sel}
    v_mov_b32 v{sel+3}, v{sel}
    """)
    def reads(u):
        st, step = u // 2, u % 2
        b = st % 6
        bg, off = b // 3, (b % 3) * 16384
        xo = ((st // 2) % 4) * 16384
        ps = u % 2
        L = []
        for tau in range(2):
            L.append(f'ds_read_b64_tr_b16 {v(fw[ps][tau], 2)}, v{aw[bg][tau][step]} offset:{off}')
            L.append(f'ds_read_b64_tr_b16 {v(fw[ps][tau] + 2, 2)}, v{aw[bg][tau][step]} offset:{off + 1024}')
            L.append(f'ds_read_b128 {v(fx[ps][tau], 4)}, v{ax[tau][2 * (st % 2) + step]} offset:{xo}')
        return L
    def stat_ops(ps, i):
        r = fx[ps][0] + i; t = tp[i % 2]
        return [f'v_lshlrev_b32 v{t}, 16, v{r}', f'v_and_b32 v{t+1}, s{sMASK}, v{r}', f'v_add_f32 v{vsum}, v{vsum}, v{t}', f'v_add_f32 v{vsum+1}, v{vsum+1}, v{t+1}',
                f'v_fmac_f32 v{vsq}, v{t}, v{t}', f'v_fmac_f32 v{vsq+1}, v{t+1}, v{t+1}']
    def step(u, fill):
        ps = u % 2
        order = [(0, 0), (1, 1), (0, 1), (1, 0)]
        for k, (sg, tau) in enumerate(order):
            if k == 0: a('s_waitcnt lgkmcnt(3)')
            if k == 1: a(f's_waitcnt lgkmcnt({sum(1 for q in fill[0] if str(q).startswith("ds_"))})')
            c = '0' if u == 0 else v(acc[sg][tau], 16)
            a(f'v_mfma_f32_32x32x16_bf16 {v(acc[sg][tau], 16)}, {v(fw[ps][tau], 4)}, {v(fx[ps][sg], 4)}, {c}')
            emit(fill[k])
        c = '0' if u == 0 else v(vcs, 4)
        a(f'v_mfma_f32_16x16x32_bf16 {v(vcs, 4)}, {v(fw[ps][0], 4)}, {v(sel, 4)}, {c}')
        emit(fill[4])
    T.mark()
    a(f's_waitcnt vmcnt({vm.wait({("x", 0), ("w", 0)})})')
    a('s_barrier')
    T.mark()
    a('s_waitcnt lgkmcnt(0)')
    emit(reads(0))
    for st in range(NST):
        R = reads(2 * st + 1)
        S = [stat_ops(0, i) for i in range(4)]
        step(2 * st, [R[0:3], R[3:6] + S[0], S[1], S[2], S[3]])
        fill = [[], [], [], [], []]
        if st + 1 < NST:
            a(f's_waitcnt vmcnt({vm.wait({("x", (st + 1) // 2), ("w", st + 1)})})')
            a('s_barrier')
            R = reads(2 * st + 2)
            D = [dma_x(st + 6) if st + 6 < NST else [], [], []]
            if st + 5 < NST: D[1], D[2] = dma_w(st + 5, 0), dma_w(st + 5, 1)
            fill = [R[0:3], R[3:6], D[0], D[1], D[2]]
        step(2 * st + 1, fill)
    T.mark()
    a('s_waitcnt lgkmcnt(0)')
    a(f'v_add_f32 v{vsum}, v{vsum}, v{vsum+1}\n v_add_f32 v{vsum+1}, v{vsq}, v{vsq+1}')
    for r in (vsum, vsum + 1):
        a(f'v_mov_b32 v{t0}, v{r}')
        a(f'v_permlane32_swap_b32 v{r}, v{t0}')
        a(f'v_add_f32 v{r}, v{r}, v{t0}')
    a('s_barrier')
    a(f'''
    s_lshl_b32 s5, s{sWM}, 10
    s_and_b32 s6, s{sWN}, 1
    s_lshl_b32 s6, s6, 9
    s_add_u32 s5, s5, s6
    s_lshr_b32 s7, s{sWN}, 1
    s_lshl_b32 s7, s7, 8
    v_lshlrev_b32 v{t0}, 3, v{l32}
    v_add_u32 v{t1}, s5, v{t0}
    v_add_u32 v{t2}, s7, v{t1}
    ds_write_b64 v{t2}, {v(vsum, 2)}
    s_lshl_b32 s6, s{sWM}, 9
    s_lshl_b32 s7, s{sWN}, 7
    s_add_u32 s6, s6, s7
    s_add_u32 s6, s6, 4096
    v_and_b32 v{t2}, 1, v{lane}
    v_lshl_add_u32 v{t2}, v{t2}, 6, s6
    v_and_b32 v{t0}, 48, v{lane}
    v_add_u32 v{t2}, v{t2}, v{t0}
    ds_write_b128 v{t2}, {v(vcs, 4)}
    s_waitcnt lgkmcnt(0)
    s_barrier
    ''')
    st = [[V(2), V(2)] for _ in range(2)]
    cs = [V(16, 4) for _ in range(2)]
    a(f'ds_read_b64 {v(st[0][0], 2)}, v{t1}')
    a(f'ds_read_b64 {v(st[0][1], 2)}, v{t1} offset:256')
    a(f'v_xor_b32 v{t1}, 0x200, v{t1}')
    a(f'ds_read_b64 {v(st[1][0], 2)}, v{t1}')
    a(f'ds_read_b64 {v(st[1][1], 2)}, v{t1} offset:256')
    a(f'v_lshl_add_u32 v{t2}, v{h}, 4, s6')
    for q in range(4):
        a(f'ds_read_b128 {v(cs[0] + 4 * q, 4)}, v{t2} offset:{32 * q}')
    a(f'v_xor_b32 v{t2}, 0x200, v{t2}')
    for q in range(4):
        a(f'ds_read_b128 {v(cs[1] + 4 * q, 4)}, v{t2} offset:{32 * q}')
    vst = V(); mb_ = [V(2), V(2)]
    a(f'''
    s_lshl_b32 s5, s{sMB}, 2
    s_lshl_b32 s6, s{sWM}, 1
    s_add_u32 s5, s5, s6
    s_and_b32 s6, s{sWN}, 1
    s_add_u32 s7, s5, s6
    s_xor_b32 s8, s7, 1
    s_mul_i32 s7, s7, {2*49152}
    s_mul_i32 s8, s8, {2*49152}
    s_lshl_b32 s5, s{sNB}, 2
    s_add_u32 s5, s5, s{sWN}
    s_lshl_b32 s5, s5, 10
    v_bfe_u32 v{t0}, v{lane}, 4, 1
    v_mul_u32_u24 v{t0}, 49152, v{t0}
    v_lshl_add_u32 v{t0}, v{h}, 8, v{t0}
    v_and_b32 v{vst}, 15, v{lane}
    v_lshl_add_u32 v{vst}, v{vst}, 4, v{t0}
    v_add_u32 v{vst}, s5, v{vst}
    s_waitcnt lgkmcnt(8)
    ''')
    for sg in range(2):
        s0, s1 = st[sg]
        a(f'v_pk_add_f32 {v(s0, 2)}, {v(s0, 2)}, {v(s1, 2)}')
        a(f'v_mul_f32 v{s0}, {f32(1/640)}, v{s0}')
        a(f'v_mul_f32 v{s0+1}, {f32(1/640)}, v{s0+1}')
        a(f'v_fma_f32 v{s0+1}, -v{s0}, v{s0}, v{s0+1}')
        a(f'v_max_f32 v{s0+1}, 0, v{s0+1}')
        ln_scalars(a, s0, s0 + 1, mb_[sg], mb_[sg] + 1, t0)
        a(f'v_mul_f32 v{mb_[sg]+1}, v{mb_[sg]+1}, v{mb_[sg]+1}')
    a('s_waitcnt lgkmcnt(0)')
    for sg in range(2):
        m = mb_[sg]
        for i in range(0, 16, 2):
            for tau in range(2):
                d = v(acc[sg][tau] + i, 2)
                a(f'v_pk_fma_f32 {d}, {v(cs[tau] + i, 2)}, {v(m, 2)}, {d} op_sel_hi:[1,0,1] neg_lo:[0,1,0] neg_hi:[0,1,0]')
            d = v(acc[sg][0] + i, 2)
            a(f'v_pk_mul_f32 {d}, {d}, {v(acc[sg][1] + i, 2)}')
            a(f'v_pk_mul_f32 {d}, {d}, {v(m, 2)} op_sel:[0,1] op_sel_hi:[1,1]')
            a(f'v_cvt_pk_bf16_f32 v{acc[sg][1] + i // 2}, v{acc[sg][0] + i}, v{acc[sg][0] + i + 1}') if False else None
        for i in range(0, 16, 2):
            a(f'v_cvt_pk_bf16_f32 v{acc[sg][1] + i // 2}, v{acc[sg][0] + i}, v{acc[sg][0] + i + 1}')
        so = 's7' if sg == 0 else 's8'
        for p in range(2):
            a(f'buffer_store_dwordx4 {v(acc[sg][1] + 4 * p, 4)}, v{vst}, s[{SH}:{SH+3}], {so} offen offset:{512 * p}')
    T.mark()
    a('s_waitcnt vmcnt(0)')
    T.mark()
    T.flush(t0, t1)
    a('s_endpgm')
    return V.hi
```

```python
from asm import *
from stamp import Stamps
from k1g import srd, S_X, S_WD, S_OUT, S_WS, H_OFF, U_OFF, KK
from k1a import N2S, QS, YBYTES, WD_OFF
import os
X = os.environ.get('X', '')
SLOT = 5120; RING = 6 * SLOT; PART = 4 * RING
LDS = PART + 40960
PS = 336

def gen_k2(a):
    T = Stamps(a, 2)
    T.mark()
    SH, SW, SU, SX, SO = 36, 40, 44, 48, 60
    sMB, sNB, sWV = 52, 53, 54
    srd(a, SH, S_WS, 2048 * 3072, H_OFF)
    srd(a, SW, S_WS, 1536 * 1280, WD_OFF)
    srd(a, SU, S_WS, YBYTES, U_OFF)
    srd(a, SX, S_X, 2048 * 1280)
    srd(a, SO, S_OUT, 2048 * 1280)
    a(f'''
    s_and_b32 s5, s2, 7
    s_lshr_b32 s6, s2, 3
    s_lshr_b32 s7, s5, 1
    s_lshl_b32 s7, s7, 3
    s_and_b32 s8, s6, 7
    s_add_u32 s{sMB}, s7, s8
    s_and_b32 s7, s5, 1
    s_lshl_b32 s7, s7, 2
    s_lshr_b32 s8, s6, 3
    s_add_u32 s{sNB}, s7, s8
    s_and_b32 s{sWV}, s4, 3
    ''')
    V = VAlloc(1)
    lane = V(); t0 = V(); t1 = V(); t2 = V(); vi = V(); vg = V()
    a(f'''
    v_and_b32 v{lane}, 63, v0
    v_and_b32 v{vi}, 15, v{lane}
    v_lshrrev_b32 v{vg}, 4, v{lane}
    ''')
    base_mark = V.mark()
    a('s_cmp_ge_u32 s4, 4')
    a('s_cbranch_scc1 K2_AF')
    sM0, sOH, sOW = 55, 56, 57
    vh = V(); vr = V()
    a(f'''
    s_mul_i32 s5, s{sMB}, {4*49152}
    s_mul_i32 s6, s{sWV}, {12*1024}
    s_add_u32 s{sOH}, s5, s6
    v_lshlrev_b32 v{vh}, 4, v{lane}
    s_mul_i32 s{sOW}, s{sWV}, {12*5120}
    s_mul_i32 s5, s{sNB}, {48*5120}
    s_add_u32 s{sOW}, s{sOW}, s5
    s_mul_i32 s{sM0}, s{sWV}, {RING}
    s_mov_b32 s8, 6554
    ''')
    vh2 = [vh, V(), V(), V()]
    for m in range(1, 4):
        a(f'v_add_u32 v{vh2[m]}, {49152*m}, v{vh}')
    acc = [[V(4) for _ in range(5)] for _ in range(4)]
    hf = [[V(4) for _ in range(4)] for _ in range(6)]
    wf = [[V(4) for _ in range(5)] for _ in range(2)]
    def loads(i):
        L = []
        sl = i % 6
        for n in range(5):
            if n == 0: L.append([f's_add_u32 m0, s{sM0}, {sl*SLOT}', f'buffer_load_dwordx4 v{vh}, s[{SW}:{SW+3}], s{sOW} offen lds'])
            elif n < 4: L.append([f'buffer_load_dwordx4 v{vh}, s[{SW}:{SW+3}], s{sOW} offen offset:{1024*n} lds'])
            else: L.append([f's_add_u32 m0, s{sM0}, {sl*SLOT + 2048}', f's_add_u32 s{sOW}, s{sOW}, 2048', f'buffer_load_dwordx4 v{vh}, s[{SW}:{SW+3}], s{sOW} offen offset:2048 lds'])
        L[-1].append(f's_add_u32 s{sOW}, s{sOW}, 3072')
        for m in range(4):
            L.append([f'buffer_load_dwordx4 {v(hf[sl][m],4)}, v{vh2[m]}, s[{SH}:{SH+3}], s{sOH} offen'])
        L[-1].append(f's_add_u32 s{sOH}, s{sOH}, 1024')
        return L
    for i in range(6):
        for g_ in loads(i):
            for q in g_: a(q)
    a(f'v_add_u32 v{vr}, s{sM0}, v{vh}')
    hiD = V.hi
    T.mark()
    def trs(i):
        L = []
        for nt in range(5):
            L.append(f'ds_read_b128 {v(wf[i%2][nt], 4)}, v{vr} offset:{(i%6)*SLOT + 1024*nt}')
        return L
    a('s_waitcnt vmcnt(49)')
    T.mark()
    for q in trs(0): a(q)
    issued = 6
    for i in range(12):
        if i + 1 < 12:
            n_out = (issued - (i + 2)) * 9 + 4
        else:
            n_out = 0
        a(f's_waitcnt vmcnt({n_out}) lgkmcnt(0)')
        fill = []
        if i + 1 < 12:
            fill += [[q] for q in trs(i + 1)]
        post = []
        if i + 6 < 12:
            L = loads(i + 6)
            fill += L[:5]
            post = L[5:]
            issued += 1
        k = 0
        for m in range(4):
            for nt in range(5):
                c = '0' if i == 0 else v(acc[m][nt], 4)
                a(f'v_mfma_f32_16x16x32_bf16 {v(acc[m][nt],4)}, {v(wf[i%2][nt],4)}, {v(hf[i%6][m],4)}, {c}')
                if k < len(fill):
                    for q in fill[k]: a(q)
                k += 1
        for g_ in post:
            for q in g_: a(q)
    T.mark()
    a(f'''
    v_mul_u32_u24 v{t0}, {PS}, v{vi}
    v_lshl_add_u32 v{t0}, v{vg}, 4, v{t0}
    v_add_u32 v{t0}, s{sM0}, v{t0}
    ''')
    for m in range(4):
        for nt in range(5):
            a(f'ds_write_b128 v{t0}, {v(acc[m][nt],4)} offset:{16*m*PS + 64*nt}')
    a('s_branch K2_FIN')
    a.label('K2_AF')
    a.hist = []
    T.n = min(T.n, 1)
    a('s_setprio 3')
    V.release(base_mark)
    sPAR, sT0 = 55, 56
    vu = V()
    a(f'''
    s_lshr_b32 s{sPAR}, s{sWV}, 1
    s_and_b32 s{sT0}, s{sWV}, 1
    s_mul_i32 s{sT0}, s{sT0}, 5
    s_mul_i32 s5, s{sMB}, {2*N2S}
    s_mul_i32 s6, s{sPAR}, {164*16}
    s_add_u32 s5, s5, s6
    s_lshl_b32 s6, s{sT0}, 8
    s_add_u32 s5, s5, s6
    v_mul_u32_u24 v{vu}, {QS}, v{vg}
    v_lshl_add_u32 v{vu}, v{vi}, 4, v{vu}
    v_add_u32 v{vu}, s5, v{vu}
    s_mov_b32 s8, {4*QS}
    s_mov_b32 s9, {N2S}
    s_mov_b32 s10, {N2S + 4*QS}
    ''')
    uf = [[[V(4) for _ in range(2)] for _ in range(2)] for _ in range(3)]
    so_ = [['0', 's8'], ['s9', 's10']]
    def uload(z_, ring, off):
        for aa in range(2):
            for kp in range(2):
                a(f'buffer_load_dwordx4 {v(uf[ring][aa][kp],4)}, v{vu}, s[{SU}:{SU+3}], {so_[aa][kp]} offen offset:{off}')
    uload(-1, 2, 160 * 16)
    uload(0, 0, 0)
    uload(1, 1, 256)
    T6 = [[[[V(4) for _ in range(2)] for _ in range(2)] for _ in range(2)] for _ in range(2)]
    accA = [[V(4) for _ in range(3)] for _ in range(4)]
    D6 = [[V(4) for _ in range(2)] for _ in range(2)]
    zf = [V(4) for _ in range(4)]
    G = [V(4) for _ in range(3)]
    nyq = V(4)
    gs = [[V(2) for _ in range(4)] for _ in range(3)]
    rot = [V(2) for _ in range(3)]
    tq = V(2); kf = V();
    u0, u1, ang, p = accA[0][0], accA[0][0] + 1, accA[0][0] + 2, accA[0][1]
    a(f'v_lshlrev_b32 v{t2}, 2, v{vg}')
    a(f'v_cvt_f32_u32 v{t2}, v{t2}')
    a(f's_lshl_b32 s6, s{sMB}, 1')
    for aa in range(2):
        for nh in range(2):
            a(f's_add_u32 s5, s6, {1024*nh + aa}')
            a(f'v_lshl_add_u32 v{u1}, v{vi}, 6, s5')
            a(f'v_cvt_f32_u32 v{u1}, v{u1}')
            a(f'v_mul_f32 v{u1}, {f32(1/2048)}, v{u1}')
            a(f'v_mul_f32 v{u0}, v{t2}, v{u1}')
            for kp in range(2):
                for r in range(4):
                    a(f'v_fmamk_f32 v{ang + r % 2}, v{u1}, {f32(16*kp + r)}, v{u0}')
                    a(f'v_cos_f32 v{p+2*r}, v{ang + r % 2}')
                    a(f'v_sin_f32 v{p+2*r+1}, v{ang + r % 2}')
                for r in range(4):
                    a(f'v_cvt_pk_bf16_f32 v{T6[aa][nh][kp][0]+r}, v{p+2*r}, -v{p+2*r+1}')
                    a(f'v_cvt_pk_bf16_f32 v{T6[aa][nh][kp][1]+r}, v{p+2*r+1}, v{p+2*r}')
    a(f'''
    s_lshl_b32 s5, s{sT0}, 5
    s_add_u32 s5, s5, s{sPAR}
    v_lshl_add_u32 v{kf}, v{vg}, 3, s5
    v_cvt_f32_u32 v{kf}, v{kf}
    s_mul_i32 s6, s{sNB}, 40
    v_add_u32 v{t1}, s6, v{vi}
    v_cvt_f32_u32 v{t1}, v{t1}
    ''')
    T.mark()
    for nt in range(3):
        a(f'v_add_f32 v{t2}, {f32(16.0*nt)}, v{t1}')
        a(f'v_mul_f32 v{tq}, {f32(32.0/640)}, v{t2}')
        a(f'v_fract_f32 v{tq}, v{tq}')
        a(f'v_cos_f32 v{rot[nt]}, v{tq}')
        a(f'v_sin_f32 v{rot[nt]+1}, v{tq}')
        for r in range(4):
            a(f'v_add_f32 v{tq+1}, {f32(2.0*r)}, v{kf}')
            a(f'v_mul_f32 v{tq+1}, v{tq+1}, v{t2}')
            a(f'v_mul_f32 v{tq+1}, {f32(1/640)}, v{tq+1}')
            a(f'v_fract_f32 v{tq+1}, v{tq+1}')
            a(f'v_cos_f32 v{gs[nt][r]}, v{tq+1}')
            a(f'v_sin_f32 v{gs[nt][r]+1}, v{tq+1}')
    def gpack():
        L = []
        for nt in range(3):
            for r in range(4):
                L.append(f'v_cvt_pk_bf16_f32 v{G[nt]+r}, v{gs[nt][r]}, -v{gs[nt][r]+1}')
        return L
    def grot():
        L = []
        for nt in range(3):
            C, S = rot[nt], rot[nt] + 1
            for r in range(4):
                c, s_ = gs[nt][r], gs[nt][r] + 1
                t = tq + r % 2
                L += [f'v_mul_f32 v{t}, v{s_}, v{S}', f'v_mul_f32 v{s_}, v{s_}, v{C}', f'v_fmac_f32 v{s_}, v{c}, v{S}', f'v_fma_f32 v{c}, v{c}, v{C}, -v{t}']
        return L
    a(f's_cmp_eq_u32 s{sWV}, 0')
    a('s_cbranch_scc0 K2_NONYQ')
    a('s_waitcnt vmcnt(8)')
    for aa in range(2):
        for nh in range(2):
            d = v(zf[2*aa+nh], 4)
            for kp in range(2):
                a(f'v_mfma_f32_16x16x32_bf16 {d}, {v(uf[2][aa][kp],4)}, {v(T6[aa][nh][kp][0],4)}, {"0" if kp == 0 else d}')
    for m in range(4):
        a(f'v_mul_f32 v{nyq+m}, 0.5, v{zf[m]}')
    a.label('K2_NONYQ')
    a('s_nop 4')
    a('s_waitcnt vmcnt(8)')
    uload(2, 2, 512)
    a(f'''
    v_cmp_gt_u32 s[58:59], 16, v{lane}
    s_cmp_eq_u32 s{sWV}, 0
    s_cselect_b64 s[58:59], s[58:59], 0
    ''')
    for z_ in range(5):
        ring = z_ % 3
        a(f's_waitcnt vmcnt({4 * min(2, 4 - z_)})')
        fillv = (grot() if z_ > 0 else []) + gpack()
        fi = 0
        nper = (len(fillv) + 15) // 16
        for aa in range(2):
            for kp in range(2):
                for nh in range(2):
                    for c_ in range(2):
                        d = v(D6[nh][c_], 4)
                        a(f'v_mfma_f32_16x16x32_bf16 {d}, {v(uf[ring][aa][kp],4)}, {v(T6[aa][nh][kp][c_],4)}, {"0" if kp == 0 else d}')
                        for q in fillv[fi:fi + nper]: a(q)
                        fi += nper
            for nh in range(2):
                if z_ == 0:
                    a(f'v_mul_f32 v{t0}, 0.5, v{D6[nh][0]}')
                    a(f'v_cndmask_b32 v{D6[nh][0]}, v{D6[nh][0]}, v{t0}, s[58:59]')
                    a(f'v_cndmask_b32 v{D6[nh][1]}, v{D6[nh][1]}, v{nyq + 2*aa + nh}, s[58:59]')
                for r in range(4):
                    a(f'v_cvt_pk_bf16_f32 v{zf[2*aa+nh]+r}, v{D6[nh][0]+r}, v{D6[nh][1]+r}')
        if z_ + 3 < 5:
            uload(z_ + 3, ring, 256 * (z_ + 3))
        if z_ == 0:
            a(f'v_lshlrev_b32 v{t0}, 31, v{vi}')
            a(f'v_or_b32 v{t0}, 0x3f803f80, v{t0}')
            for nt in range(3):
                a(f'v_cndmask_b32 v{G[nt]}, v{G[nt]}, v{t0}, s[58:59]')
        for m in range(4):
            for nt in range(3):
                d = v(accA[m][nt], 4)
                a(f'v_mfma_f32_16x16x32_bf16 {d}, {v(G[nt],4)}, {v(zf[m],4)}, {"0" if z_ == 0 else d}')
    T.mark()
    T.mark()
    a(f'''
    s_mul_i32 s5, s{sWV}, 10240
    s_add_u32 s5, s5, {PART}
    v_mul_u32_u24 v{t0}, 160, v{vi}
    v_lshl_add_u32 v{t0}, v{vg}, 4, v{t0}
    v_add_u32 v{t0}, s5, v{t0}
    ''')
    for m in range(4):
        for nt in range(2):
            a(f'ds_write_b128 v{t0}, {v(accA[m][nt],4)} offset:{16*m*160 + 64*nt}')
    a('s_mov_b32 exec_hi, 0')
    for m in range(4):
        a(f'ds_write_b128 v{t0}, {v(accA[m][2],4)} offset:{16*m*160 + 128}')
    a('s_mov_b64 exec, -1')
    hiA = V.hi
    a.label('K2_FIN')
    a.hist = []
    a('s_nop 3')
    V.release(base_mark)
    xr = [[V(2), V(2)] for _ in range(2)]
    vo = [V(), V()]; vd = [V(), V()]; va_ = [V(), V()]
    a('s_mov_b32 s8, 6554')
    a(f's_mul_i32 s5, s{sMB}, {2*1280}')
    a(f's_mul_i32 s6, s{sNB}, 80')
    a('s_add_u32 s5, s5, s6')
    for j in range(2):
        a(f'''
        v_add_u32 v{t0}, {512*j}, v0
        v_mul_u32_u24 v{t1}, s8, v{t0}
        v_lshrrev_b32 v{t1}, 16, v{t1}
        v_mul_u32_u24 v{t2}, 10, v{t1}
        v_sub_u32 v{t0}, v{t0}, v{t2}
        v_mul_u32_u24 v{vd[j]}, {PS}, v{t1}
        v_lshl_add_u32 v{vd[j]}, v{t0}, 4, v{vd[j]}
        v_mul_u32_u24 v{va_[j]}, 160, v{t1}
        v_lshl_add_u32 v{va_[j]}, v{t0}, 4, v{va_[j]}
        v_add_u32 v{va_[j]}, {PART}, v{va_[j]}
        v_and_b32 v{t2}, 31, v{t1}
        v_lshlrev_b32 v{t2}, 6, v{t2}
        v_lshrrev_b32 v{t1}, 5, v{t1}
        v_add_u32 v{t2}, v{t2}, v{t1}
        v_mul_u32_u24 v{t2}, 1280, v{t2}
        v_lshl_add_u32 v{t2}, v{t0}, 3, v{t2}
        v_add_u32 v{vo[j]}, s5, v{t2}
        ''')
        if j == 1:
            a(f'v_cmp_gt_u32 vcc, 128, v0')
            a(f'v_mov_b32 v{t0}, 0x7fffffff')
            a(f'v_cndmask_b32 v{vo[1]}, v{t0}, v{vo[1]}, vcc')
        for hh in range(2):
            a(f'buffer_load_dwordx2 {v(xr[j][hh],2)}, v{vo[j]}, s[{SX}:{SX+3}], 0 offen offset:{640*hh}')
    a('s_waitcnt lgkmcnt(0)')
    a('s_barrier')
    T.mark()
    pd = [[V(4) for _ in range(4)] for _ in range(2)]
    pa = [V(4) for _ in range(4)]
    vd2 = V()
    a('s_mov_b32 s9, 0xffff0000')
    NEG = 'neg_lo:[0,1] neg_hi:[0,1]'
    for j in range(2):
        if j == 1:
            a('s_cmp_ge_u32 s4, 2')
            a('s_cbranch_scc1 K2_DONE')
        a(f'v_add_u32 v{vd2}, {2*RING}, v{vd[j]}')
        for w in range(4):
            a(f'ds_read_b128 {v(pa[w],4)}, v{va_[j]} offset:{10240*w}')
        for hh in range(2):
            for w in range(4):
                a(f'ds_read_b128 {v(pd[hh][w],4)}, v{vd[j] if w < 2 else vd2} offset:{RING*(w%2) + 160*hh}')
        a('s_waitcnt lgkmcnt(8)')
        for r in range(4):
            a(f'v_add_f32 v{pa[0]+r}, v{pa[0]+r}, v{pa[1]+r}')
            a(f'v_add_f32 v{pa[2]+r}, v{pa[2]+r}, v{pa[3]+r}')
        for r in range(4):
            a(f'v_sub_f32 v{pa[1]+r}, v{pa[0]+r}, v{pa[2]+r}')
            a(f'v_add_f32 v{pa[0]+r}, v{pa[0]+r}, v{pa[2]+r}')
        a(f's_waitcnt vmcnt({2 if j == 0 else 2})')
        for hh in range(2):
            for r in range(4):
                src = xr[j][hh] + r // 2
                if r % 2 == 0: a(f'v_lshlrev_b32 v{pa[2]+r}, 16, v{src}')
                else: a(f'v_and_b32 v{pa[2]+r}, s9, v{src}')
            for r in range(4):
                a(f'v_add_f32 v{pa[hh]+r}, v{pa[hh]+r}, v{pa[2]+r}')
            a(f's_waitcnt lgkmcnt({4 if hh == 0 else 0})')
            for r in range(4):
                a(f'v_add_f32 v{pd[hh][0]+r}, v{pd[hh][0]+r}, v{pd[hh][1]+r}')
                a(f'v_add_f32 v{pd[hh][2]+r}, v{pd[hh][2]+r}, v{pd[hh][3]+r}')
            for r in range(4):
                a(f'v_add_f32 v{pd[hh][0]+r}, v{pd[hh][0]+r}, v{pd[hh][2]+r}')
                a(f'v_add_f32 v{pd[hh][0]+r}, v{pd[hh][0]+r}, v{pa[hh]+r}')
            a(f'v_cvt_pk_bf16_f32 v{pd[hh][1]}, v{pd[hh][0]}, v{pd[hh][0]+1}')
            a(f'v_cvt_pk_bf16_f32 v{pd[hh][1]+1}, v{pd[hh][0]+2}, v{pd[hh][0]+3}')
            a(f'buffer_store_dwordx2 {v(pd[hh][1],2)}, v{vo[j]}, s[{SO}:{SO+3}], 0 offen offset:{640*hh}')
    a.label('K2_DONE')
    T.mark()
    if T.n:
        a('s_waitcnt vmcnt(0)')
        T.mark()
        T.flush(t0, t1)
    a('s_endpgm')
    return max(hiD, hiA, V.hi), LDS, 512
```

```python
import os
ON = bool(os.environ.get('STAMP'))
T_OFF = 24 << 20
class Stamps:
    def __init__(self, a, region=0):
        self.a = a; self.n = 0; self.region = region
    def mark(self):
        if not ON: return
        assert self.n < 10
        if self.n == 0: self.a('s_memrealtime s[90:91]')
        self.a(f's_memtime s[{70 + 2 * self.n}:{71 + 2 * self.n}]')
        self.n += 1
    def flush(self, vt0, vt1):
        if not ON: return
        a = self.a
        a(f's_memrealtime s[92:93]')
        a(f's_waitcnt lgkmcnt(0)')
        a(f's_add_u32 s64, s34, {T_OFF + self.region * (1 << 20)}')
        a(f's_addc_u32 s65, s35, 0')
        a(f's_mov_b32 s66, 0x100000')
        a(f's_mov_b32 s67, 0x00020000')
        a(f's_lshl_b32 s68, s2, 3')
        a(f's_add_u32 s68, s68, s4')
        a(f's_lshl_b32 s68, s68, 7')
        a(f'v_mov_b32 v{vt1}, s68')
        for i in range(24):
            if i < 2 * self.n or i >= 20:
                a(f'v_mov_b32 v{vt0}, s{70 + i}')
                a(f'buffer_store_dword v{vt0}, v{vt1}, s[64:67], 0 offen offset:{4 * i}')
```

```python
import sys
from asm import *
import k1g

def kd(name, vgpr, sgpr=96):
    vg = (vgpr + 7) // 8 * 8
    return f'''.p2align 6
.amdhsa_kernel {name}
  .amdhsa_next_free_vgpr {vg}
  .amdhsa_next_free_sgpr {sgpr}
  .amdhsa_accum_offset {min(256, (vg + 3) // 4 * 4)}
  .amdhsa_group_segment_fixed_size 0
  .amdhsa_kernarg_size 80
  .amdhsa_user_sgpr_count 2
  .amdhsa_user_sgpr_kernarg_segment_ptr 1
  .amdhsa_system_sgpr_workgroup_id_x 1
.end_amdhsa_kernel
'''
def head(a, name):
    a.raw(f'.globl {name}\n.p2align 8\n.type {name},@function\n{name}:')
    a.hist = []

def prologue(a):
    a('''
    s_load_dwordx16 s[16:31], s[0:1], 0
    s_load_dwordx4 s[32:35], s[0:1], 64
    v_lshrrev_b32 v1, 6, v0
    s_nop 0
    v_readfirstlane_b32 s4, v1
    ''')

def build(mode):
    a = Asm()
    launches = []
    kds = []
    a.raw('.amdgcn_target "amdgcn-amd-amdhsa--gfx950"\n.text')
    head(a, 'k1_kernel')
    a('s_cmp_ge_u32 s2, 256')
    a('s_cbranch_scc1 K1_END')
    prologue(a)
    a('s_cmp_lt_u32 s2, 64')
    a('s_waitcnt lgkmcnt(0)')
    a('s_cbranch_scc1 K1_A')
    a('s_sub_u32 s3, s2, 64')
    hi = k1g.gen_g(a)
    a.label('K1_A')
    a.hist = []
    if mode >= 1:
        import k1a
        hi = max(hi, k1a.gen_a(a, merged=True))
    a.label('K1_END')
    a('s_endpgm')
    launches.append('; @launch kernel=k1_kernel grid=(256,1,1) block=(512,1,1) lds=163840')
    kds.append(kd('k1_kernel', hi))
    try:
        import k2
        have_k2 = mode >= 2 and len(sys.argv) > 3
    except ImportError:
        have_k2 = False
    if have_k2:
        head(a, 'k2_kernel')
        a('s_cmp_ge_u32 s2, 256')
        a('s_cbranch_scc1 K2_END')
        prologue(a)
        a('s_waitcnt lgkmcnt(0)')
        hi, lds, blk = k2.gen_k2(a)
        a.label('K2_END')
        a('s_endpgm')
        launches.append(f'; @launch kernel=k2_kernel grid=(256,1,1) block=({blk},1,1) lds={lds}')
        kds.append(kd('k2_kernel', hi))
    txt = '\n'.join(launches) + '\n' + a.text() + '.section .rodata,"a"\n' + ''.join(kds)
    return txt

if __name__ == '__main__':
    mode = int(sys.argv[1])
    open(sys.argv[2], 'w').write(build(mode))
```

```python
from asm import *
from stamp import Stamps
from k1g import srd, bf16r, ln_scalars, S_X, S_WR, S_WI, S_WS, S_DBG, S_WD, Y_OFF, U_OFF, KK
import os
from k1g import X, IN, ST, LD
N2S = 8 * KK * 16
QS = KK * 16
YBYTES = 64 * N2S
WD_OFF = 6291456
L_WF = 45056
L_WD = L_WF + 65536
L_S1 = L_WD + 40960

def allreduce16(a, r):
    for m in ('quad_perm:[1,0,3,2]', 'quad_perm:[2,3,0,1]', 'row_half_mirror', 'row_mirror'):
        a(f'v_add_f32_dpp v{r}, v{r}, v{r} {m} row_mask:0xf bank_mask:0xf')

def cheb(a, dst, cur, prev, M):
    a(f'v_pk_fma_f32 {v(dst,2)}, {v(cur,2)}, {v(M,2)}, {v(prev,2)} op_sel_hi:[1,0,1] neg_lo:[0,0,1] neg_hi:[0,0,1]')
def cheb_hi(a, dst, cur, prev, M):
    a(f'v_pk_fma_f32 {v(dst,2)}, {v(cur,2)}, {v(M,2)}, {v(prev,2)} op_sel:[0,1,0] op_sel_hi:[1,1,1] neg_lo:[0,0,1] neg_hi:[0,0,1]')

def gen_a(a, merged):
    V = VAlloc(1)
    T = Stamps(a)
    T.mark()
    SX, SY = 36, 40
    sN2, sPAR, sT0, sCNT = 52, 53, 54, 55
    RS = 336; SEQ = 32 * RS; SPEC = 4 * SEQ
    sc = ' sc1' if merged else ''
    srd(a, SX, S_X, 2048 * 1280)
    srd(a, SY, S_WS, YBYTES, Y_OFF)
    a(f'''
    s_and_b32 s5, s2, 7
    s_lshr_b32 s6, s2, 3
    s_lshl_b32 s5, s5, 3
    s_add_u32 s{sN2}, s5, s6
    s_lshr_b32 s{sPAR}, s4, 2
    ''')
    lane = V(); t0 = V(); t1 = V(); t2 = V(); vp = V(); vi = V(); vg = V(); vrow = V()
    raw = V(24, 4)
    ra, re_, rb, rc = raw, raw + 6, raw + 12, raw + 18
    a(f'''
    v_and_b32 v{lane}, 63, v0
    v_and_b32 v{vp}, 15, v0
    v_lshrrev_b32 v{vrow}, 4, v0
    v_lshlrev_b32 v{t0}, 6, v{vrow}
    v_add_u32 v{t0}, s{sN2}, v{t0}
    v_mul_u32_u24 v{t0}, 1280, v{t0}
    v_mul_u32_u24 v{t1}, 20, v{vp}
    v_add_u32 v{t2}, v{t0}, v{t1}
    v_sub_u32 v{t1}, v{t0}, v{t1}
    v_add_u32 v{t1}, 620, v{t1}
    buffer_load_dwordx4 {v(ra,4)}, v{t2}, s[{SX}:{SX+3}], 0 offen{IN}
    buffer_load_dword v{ra+4}, v{t2}, s[{SX}:{SX+3}], 0 offen offset:16{IN}
    buffer_load_dwordx4 {v(re_,4)}, v{t2}, s[{SX}:{SX+3}], 0 offen offset:640{IN}
    buffer_load_dword v{re_+4}, v{t2}, s[{SX}:{SX+3}], 0 offen offset:656{IN}
    buffer_load_dwordx4 {v(rb,4)}, v{t1}, s[{SX}:{SX+3}], 0 offen offset:640{IN}
    buffer_load_dwordx2 {v(rb+4,2)}, v{t1}, s[{SX}:{SX+3}], 0 offen offset:656{IN}
    buffer_load_dwordx4 {v(rc,4)}, v{t1}, s[{SX}:{SX+3}], 0 offen{IN}
    buffer_load_dwordx2 {v(rc+4,2)}, v{t1}, s[{SX}:{SX+3}], 0 offen offset:16{IN}
    v_lshrrev_b32 v{vg}, 4, v{lane}
    v_mov_b32 v{vi}, v{vp}
    ''')
    a(f'''
    s_lshl_b32 s5, s4, 2
    s_mov_b32 s6, 0x74208630
    s_lshr_b32 s6, s6, s5
    s_and_b32 s{sT0}, s6, 15
    s_lshr_b32 s6, 0xC3, s4
    s_and_b32 s{sCNT}, s6, 1
    ''')
    Bc = [[V(4) for _ in range(5)] for _ in range(3)]
    Bs = [[V(4) for _ in range(5)] for _ in range(3)]
    mk = V.mark()
    R0 = V(20, 2); R1 = V(20, 2); MM = V(2); kf = V(); gd = V(); ang = V(2)
    u0 = V(); u1 = V()
    a(f'''
    s_lshl_b32 s5, s4, 9
    s_and_b32 s5, s5, 0x400
    s_and_b32 s6, s4, 1
    s_lshl_b32 s7, s6, 7
    s_add_u32 s5, s5, s7
    s_add_u32 s5, s5, s{sN2}
    v_lshl_add_u32 v{t0}, v{vg}, 8, s5
    v_cvt_f32_u32 v{t0}, v{t0}
    s_lshl_b32 s5, s{sPAR}, 4
    v_add_u32 v{t1}, s5, v{vi}
    v_cvt_f32_u32 v{t1}, v{t1}
    v_mul_f32 v{u1}, {f32(1/2048)}, v{t1}
    v_mul_f32 v{ang}, v{u1}, v{t0}
    v_fmamk_f32 v{ang+1}, v{u1}, {f32(64.0)}, v{ang}
    v_cos_f32 v{R0}, v{ang}
    v_sin_f32 v{R0+1}, v{ang}
    v_cos_f32 v{R0+2}, v{ang+1}
    v_sin_f32 v{R0+3}, v{ang+1}
    s_lshr_b32 s5, s4, 1
    s_lshl_b32 s5, s5, 11
    s_lshl_b32 s6, s6, 3
    s_add_u32 s5, s5, s6
    s_add_u32 s5, s5, {L_S1}
    v_lshl_add_u32 v{u0}, v{lane}, 4, s5
    v_cvt_pk_bf16_f32 v{R1}, v{R0}, -v{R0+1}
    v_cvt_pk_bf16_f32 v{R1+1}, v{R0+2}, -v{R0+3}
    v_cvt_pk_bf16_f32 v{R1+2}, -v{R0+1}, -v{R0}
    v_cvt_pk_bf16_f32 v{R1+3}, -v{R0+3}, -v{R0+2}
    ds_write_b64 v{u0}, {v(R1,2)}
    ds_write_b64 v{u0}, {v(R1+2,2)} offset:1024
    s_waitcnt lgkmcnt(0)
    ''')
    a(f'v_mul_u32_u24 v{gd}, 10, v{vg}')
    a(f'v_cvt_f32_u32 v{gd}, v{gd}')
    def bgen(z):
        a(f'''
        s_add_u32 s5, s{sT0}, {z}
        s_lshl_b32 s5, s5, 5
        s_add_u32 s5, s5, s{sPAR}
        v_lshl_add_u32 v{kf}, v{vi}, 1, s5
        v_cvt_f32_u32 v{kf}, v{kf}
        v_mul_f32 v{kf}, {f32(1/640)}, v{kf}
        v_cos_f32 v{MM}, v{kf}
        v_mul_f32 v{ang}, {f32(40.0)}, v{kf}
        v_cos_f32 v{MM+1}, v{ang}
        v_pk_add_f32 {v(MM,2)}, {v(MM,2)}, {v(MM,2)}
        ''')
        rows = [R0, R1]
        for ks in range(2):
            R = rows[ks]
            for e in range(2):
                a(f'v_add_f32 v{ang+e}, {f32(40.0*ks + e)}, v{gd}')
                a(f'v_mul_f32 v{ang+e}, v{ang+e}, v{kf}')
                a(f'v_cos_f32 v{R+2*e}, v{ang+e}')
                a(f'v_sin_f32 v{R+2*e+1}, v{ang+e}')
        for e in range(2, 10):
            for ks in range(2):
                R = rows[ks]
                cheb(a, R + 2 * e, R + 2 * e - 2, R + 2 * e - 4, MM)
        for ks in range(4):
            R = rows[ks % 2]
            if ks >= 2:
                for e in range(10):
                    cheb_hi(a, R + 2 * e, rows[(ks + 1) % 2] + 2 * e, R + 2 * e, MM)
            for e in range(0, 10, 2):
                dc = Bc[z][ks] + e // 2 if e < 8 else Bc[z][4] + ks
                ds = Bs[z][ks] + e // 2 if e < 8 else Bs[z][4] + ks
                a(f'v_cvt_pk_bf16_f32 v{dc}, v{R+2*e}, v{R+2*e+2}')
                a(f'v_cvt_pk_bf16_f32 v{ds}, v{R+2*e+1}, v{R+2*e+3}')
    bgen(0); bgen(1)
    a(f's_cmp_eq_u32 s{sCNT}, 0')
    a('s_cbranch_scc1 A_SKIP_B2')
    bgen(2)
    a.label('A_SKIP_B2')
    a('s_nop 1')
    T.mark()
    V.release(mk)
    xa = V(10, 2); xe = V(10, 2); xb = V(10, 2); xc = V(10, 2); xs = V(2)
    acc = V(2); mu = V(2); sMASK = 56
    a(f's_mov_b32 s{sMASK}, 0xffff0000')
    a('s_waitcnt vmcnt(0)')
    T.mark()
    def unp(dst, r, half):
        if half == 0: a(f'v_lshlrev_b32 v{dst}, 16, v{r}')
        else: a(f'v_and_b32 v{dst}, s{sMASK}, v{r}')
    for i in range(10):
        unp(xa + i, ra + i // 2, i % 2)
        unp(xe + i, re_ + i // 2, i % 2)
        t = 10 - i
        unp(xb + i, rb + t // 2, t % 2)
        unp(xc + i, rc + t // 2, t % 2)
    unp(xs, rb, 0); unp(xs + 1, rc, 0)
    a(f'v_cmp_eq_u32 s[58:59], 15, v{vp}')
    a(f'v_cmp_ne_u32 s[64:65], 0, v{vp}')
    a(f'v_cndmask_b32 v{xb}, 0, v{xb}, s[64:65]')
    a(f'v_cndmask_b32 v{xc}, 0, v{xc}, s[64:65]')
    tA = V(2); tB = V(2); sp = V(2); nq = V()
    out = [raw, raw + 6, raw + 12, raw + 18]
    for i in range(10):
        A_, B_, C_, E_ = xa+i, xb+i, xc+i, xe+i
        p = i % 2
        a(f'v_add_f32 v{tA+p}, v{A_}, v{B_}')
        a(f'v_sub_f32 v{A_}, v{A_}, v{B_}')
        a(f'v_add_f32 v{tB+p}, v{C_}, v{E_}')
        a(f'v_sub_f32 v{E_}, v{E_}, v{C_}')
        a(f'v_add_f32 v{B_}, v{tA+p}, v{tB+p}')
        a(f'v_sub_f32 v{C_}, v{tA+p}, v{tB+p}')
        a(f'v_add_f32 v{tA+p}, v{A_}, v{E_}')
        a(f'v_sub_f32 v{E_}, v{A_}, v{E_}')
        a(f'v_mov_b32 v{A_}, v{tA+p}') if False else None
        if i < 2: a(f'v_mov_b32 v{acc+p}, v{B_}')
        else: a(f'v_add_f32 v{acc+p}, v{acc+p}, v{B_}')
        a(f'v_mov_b32 v{A_}, v{tA+p}')
    a(f'''
    v_add_f32 v{sp}, v{xs}, v{xs+1}
    v_sub_f32 v{sp+1}, v{xs+1}, v{xs}
    v_cndmask_b32 v{sp}, 0, v{sp}, s[58:59]
    v_cndmask_b32 v{sp+1}, 0, v{sp+1}, s[58:59]
    v_add_f32 v{acc}, v{acc}, v{sp}
    v_sub_f32 v{nq}, v{acc}, v{acc+1}
    v_add_f32 v{acc}, v{acc}, v{acc+1}
    ''')
    allreduce16(a, acc)
    allreduce16(a, nq)
    a(f'''
    v_mul_f32 v{mu}, {f32(1/640)}, v{acc}
    v_mul_f32 v{tA}, 4.0, v{mu}
    v_add_f32 v{tA+1}, v{mu}, v{mu}
    v_cndmask_b32 v{tB}, v{tA+1}, v{tA}, s[64:65]
    v_cndmask_b32 v{tB+1}, v{tA+1}, 0, s[64:65]
    v_sub_f32 v{xb}, v{xb}, v{tB}
    v_sub_f32 v{xa}, v{xa}, v{tB+1}
    v_cndmask_b32 v{tB}, 0, v{tA+1}, s[58:59]
    v_sub_f32 v{sp}, v{sp}, v{tB}
    ''')
    for i in range(1, 10):
        a(f'v_sub_f32 v{xb+i}, v{xb+i}, v{tA}')
    a(f'v_mul_f32 v{acc}, v{sp}, v{sp}')
    a(f'v_mul_f32 v{acc+1}, v{sp+1}, v{sp+1}')
    a(f'v_add_f32 v{acc}, v{acc}, v{acc}')
    a(f'v_add_f32 v{acc+1}, v{acc+1}, v{acc+1}')
    a(f'v_mul_f32 v{tB}, v{xb}, v{xb}')
    a(f'v_mul_f32 v{tB+1}, v{xc}, v{xc}')
    accs = [acc, acc + 1, tB, tB + 1]
    n = 0
    for b in (xb, xc, xa, xe):
        for i in range(10):
            if i == 0 and b in (xb, xc): continue
            a(f'v_fmac_f32 v{accs[n % 4]}, v{b+i}, v{b+i}'); n += 1
    a(f'v_add_f32 v{acc}, v{acc}, v{acc+1}')
    a(f'v_add_f32 v{tB}, v{tB}, v{tB+1}')
    a(f'v_add_f32 v{acc}, v{acc}, v{tB}')
    allreduce16(a, acc)
    a(f'v_mul_f32 v{acc}, {f32(1/2560)}, v{acc}')
    rr = V(2)
    ln_scalars(a, mu, acc, mu + 1, rr, t0)
    a(f'v_mul_f32 v{rr}, {f32(2.0/(2048*640))}, v{rr}')
    a(f'v_sub_f32 v{mu}, v{mu}, v{mu+1}')
    a(f'v_mul_f32 v{mu}, v{mu}, v{rr}')
    a(f'v_mul_f32 v{rr+1}, 4.0, v{mu}')
    a(f'v_add_f32 v{mu}, v{mu}, v{mu}')
    a(f'v_cndmask_b32 v{tA}, v{mu}, v{rr+1}, s[64:65]')
    for i in range(10):
        a(f'v_fma_f32 v{xb+i}, v{xb+i}, v{rr}, v{tA if i == 0 else rr+1}')
        for b in (xc, xa, xe):
            a(f'v_mul_f32 v{b+i}, v{b+i}, v{rr}')
        if i % 2 == 1:
            for sq, src in enumerate((xb, xc, xa, xe)):
                a(f'v_cvt_pk_bf16_f32 v{out[sq] + i // 2}, v{src+i-1}, v{src+i}')
    a(f'''
    v_mul_u32_u24 v{t0}, {RS}, v{vrow}
    v_lshl_add_u32 v{t1}, v{vp}, 4, v{t0}
    v_and_b32 v{t2}, 3, v{vp}
    v_lshl_add_u32 v{t0}, v{t2}, 4, v{t0}
    v_lshrrev_b32 v{t2}, 2, v{vp}
    v_lshl_add_u32 v{t0}, v{t2}, 2, v{t0}
    ''')
    for sq in range(4):
        a(f'ds_write_b128 v{t1}, {v(out[sq],4)} offset:{sq*SEQ}')
        a(f'ds_write_b32 v{t0}, v{out[sq]+4} offset:{sq*SEQ + 256}')
    a(f'''
    v_mul_f32 v{nq}, v{nq}, v{rr}
    v_fma_f32 v{sp}, v{sp}, v{rr}, v{mu}
    v_mul_f32 v{sp+1}, v{sp+1}, v{rr}
    v_mov_b32 v{tB}, 0
    v_lshlrev_b32 v{t0}, 2, v{vrow}
    s_mov_b64 exec, s[58:59]
    ds_write_b32 v{t0}, v{sp} offset:{SPEC}
    ds_write_b32 v{t0}, v{sp+1} offset:{SPEC+128}
    ds_write_b32 v{t0}, v{tB} offset:{SPEC+256}
    ds_write_b32 v{t0}, v{nq} offset:{SPEC+384}
    s_mov_b64 exec, -1
    s_waitcnt lgkmcnt(0)
    s_barrier
    ''')
    T.mark()
    V.release(mk)
    P = [[V(4) for _ in range(2)] for _ in range(3)]
    Q = [[V(4) for _ in range(2)] for _ in range(3)]
    iP = P[2]; iQ = Q[2]
    FA = [raw + 4 * i for i in range(4)]
    FB = [raw + 16, raw + 20, V(4), V(4)]
    va = V(); vsg = V()
    Are = [[V(4) for _ in range(2)] for _ in range(2)]
    Aim = [[V(4) for _ in range(2)] for _ in range(2)]
    d0 = V(); d1 = V()
    SR, SI, SWD = 44, 48, 60
    srd(a, SR, S_WR, 2048 * 642)
    srd(a, SI, S_WI, 2048 * 642)
    srd(a, SWD, S_WD, 1536 * 1280)
    a(f'''
    s_lshr_b32 s8, s2, 3
    s_lshl_b32 s8, s8, 2
    s_lshl_b32 s9, s4, 8
    s_add_u32 s8, s8, s9
    s_and_b32 s9, s2, 7
    s_mul_i32 s9, s9, 80
    v_bfe_u32 v{d0}, v{lane}, 3, 2
    v_lshrrev_b32 v{d1}, 5, v{lane}
    v_lshl_add_u32 v{d0}, v{d1}, 5, v{d0}
    v_add_u32 v{d0}, s8, v{d0}
    v_mul_u32_u24 v{d0}, 642, v{d0}
    v_add_u32 v{d0}, s9, v{d0}
    v_and_b32 v{d0}, -4, v{d0}
    v_lshrrev_b32 v{d1}, 3, v{lane}
    v_xor_b32 v{d1}, v{d1}, v{lane}
    v_and_b32 v{d1}, 7, v{d1}
    v_lshl_add_u32 v{d0}, v{d1}, 4, v{d0}
    v_cmp_gt_u32 vcc, 6, v{d1}
    v_mov_b32 v{d1}, 0x7fffffff
    v_cndmask_b32 v{d0}, v{d1}, v{d0}, vcc
    s_lshl_b32 s8, s4, 12
    ''')
    a(f'''
    s_mul_i32 s10, s4, 5120
    s_mul_i32 s11, s2, 40960
    s_add_u32 s11, s11, s10
    s_add_u32 s12, s11, 4096
    v_lshlrev_b32 v{d1}, 4, v{lane}
    ''')
    dmas = []
    for n in range(4):
        for ri, S_ in enumerate((SR, SI)):
            dmas.append([f's_mov_b32 s9, {n * 64 * 642}', f's_add_u32 m0, s8, {L_WF + ri * 32768 + n * 1024}', f'buffer_load_dwordx4 v{d0}, s[{S_}:{S_+3}], s9 offen{IN} lds'])
    for n in range(4):
        dmas.append([f's_add_u32 m0, s10, {L_WD}', f'buffer_load_dwordx4 v{d1}, s[{SWD}:{SWD+3}], s11 offen offset:{1024*n}{IN} lds'])
    dmas.append([f's_add_u32 m0, s10, {L_WD + 4096}', f'buffer_load_dwordx4 v{d1}, s[{SWD}:{SWD+3}], s12 offen{IN} lds'])
    a(f'''
    s_mul_i32 s5, s{sPAR}, {SEQ}
    v_mul_u32_u24 v{va}, {RS}, v{vi}
    v_lshl_add_u32 v{va}, v{vg}, 4, v{va}
    v_add_u32 v{va}, s5, v{va}
    s_lshl_b32 s5, s{sPAR}, 8
    s_lshl_b32 s6, s{sPAR}, 7
    s_sub_u32 s6, 256, s6
    v_lshl_add_u32 v{t0}, v{vg}, 4, s5
    v_lshl_add_u32 v{t1}, v{vg}, 4, s6
    ''')
    for mt in range(2):
        a(f'ds_read_b128 {v(iP[mt],4)}, v{t0} offset:{SPEC + 64*mt}')
        a(f'ds_read_b128 {v(iQ[mt],4)}, v{t1} offset:{SPEC + 64*mt}')
    def rd(ks):
        F = FA if ks % 2 == 0 else FB
        for cs_ in range(2):
            for mt in range(2):
                a(f'ds_read_b128 {v(F[2*cs_+mt],4)}, v{va} offset:{2*cs_*SEQ + 16*mt*RS + 64*ks}')
    rd(0)
    a(f'v_lshlrev_b32 v{vsg}, 31, v{vi}')
    a('s_waitcnt lgkmcnt(4)')
    for mt in range(2):
        for r in range(4):
            a(f'v_xor_b32 v{iP[mt]+r}, v{vsg}, v{iP[mt]+r}')
            a(f'v_xor_b32 v{iQ[mt]+r}, v{vsg}, v{iQ[mt]+r}')
    for ks in range(5):
        F = FA if ks % 2 == 0 else FB
        if ks < 4:
            rd(ks + 1)
            a('s_waitcnt lgkmcnt(4)')
        else:
            a('s_waitcnt lgkmcnt(0)')
        for z in range(3):
            if z == 2:
                a(f's_cmp_eq_u32 s{sCNT}, 0')
                a(f's_cbranch_scc1 A_SKIP_M{ks}')
            for mt in range(2):
                c = v(iP[mt],4) if ks == 0 else v(P[z][mt],4)
                a(f'v_mfma_f32_16x16x32_bf16 {v(P[z][mt],4)}, {v(F[mt],4)}, {v(Bc[z][ks],4)}, {c}')
                c = v(iQ[mt],4) if ks == 0 else v(Q[z][mt],4)
                a(f'v_mfma_f32_16x16x32_bf16 {v(Q[z][mt],4)}, {v(F[2+mt],4)}, {v(Bs[z][ks],4)}, {c}')
                if z < 2 and (z, mt) != (1, 1) and dmas:
                    for q in dmas.pop(0): a(q)
        a.label(f'A_SKIP_M{ks}')
        for ins in a.hist[-4:]: ins.states = 0
    assert not dmas
    T.mark()
    vy = V()
    a(f'v_lshlrev_b32 v{t0}, 4, v{lane}')
    a(f'v_add_u32 v{t0}, {L_S1}, v{t0}')
    for kt in range(2):
        for mt in range(2):
            a(f'ds_read_b128 {v(Are[kt][mt],4)}, v{t0} offset:{(2*kt+mt)*2048}')
            a(f'ds_read_b128 {v(Aim[kt][mt],4)}, v{t0} offset:{(2*kt+mt)*2048 + 1024}')
    a(f'''
    s_mul_i32 s5, s{sN2}, {N2S}
    s_mul_i32 s6, s{sPAR}, {164*16}
    s_add_u32 s5, s5, s6
    s_lshl_b32 s6, s{sT0}, 8
    s_add_u32 s5, s5, s6
    v_mul_u32_u24 v{vy}, {QS}, v{vg}
    v_lshl_add_u32 v{vy}, v{vi}, 4, v{vy}
    v_add_u32 v{vy}, s5, v{vy}
    s_mov_b32 s7, {4*QS}
    ''')
    def step1(z, Bq, Yr, Yi, O, store):
        for kt in range(2):
            for mt in range(2):
                c = '0' if mt == 0 else v(Yr[kt],4)
                a(f'v_mfma_f32_16x16x32_bf16 {v(Yr[kt],4)}, {v(Are[kt][mt],4)}, {v(Bq[mt],4)}, {c}')
                c = '0' if mt == 0 else v(Yi[kt],4)
                a(f'v_mfma_f32_16x16x32_bf16 {v(Yi[kt],4)}, {v(Aim[kt][mt],4)}, {v(Bq[mt],4)}, {c}')
    def fin(z, Yr, Yi, O, va_, off):
        for kt in range(2):
            for r in range(4):
                a(f'v_cvt_pk_bf16_f32 v{O[kt]+r}, v{Yr[kt]+r}, v{Yi[kt]+r}')
            so = '0' if kt == 0 else 's7'
            a(f'buffer_store_dwordx4 {v(O[kt],4)}, v{va_}, s[{SY}:{SY+3}], {so} offen offset:{off}{sc}')
    def regs_for(z):
        return ([Bc[z][0], Bc[z][1]], [Bc[z][2], Bc[z][3]], [Bs[z][0], Bs[z][1]], [Bs[z][2], Bs[z][3]])
    def pack(z):
        Bq = regs_for(z)[0]
        for mt in range(2):
            for r in range(4):
                a(f'v_cvt_pk_bf16_f32 v{Bq[mt]+r}, v{P[z][mt]+r}, v{Q[z][mt]+r}')
    a('s_nop 7')
    for z in range(2):
        pack(z)
    a('s_waitcnt lgkmcnt(0)')
    for z in range(2):
        Bq, Yr, Yi, O = regs_for(z)
        step1(z, Bq, Yr, Yi, O, None)
    Bq, Yr, Yi, O = regs_for(2)
    a(f's_cmp_eq_u32 s{sCNT}, 0')
    a('s_cbranch_scc1 A_S1_NOT3')
    pack(2)
    a(f'v_add_u32 v{t2}, 512, v{vy}')
    a('s_branch A_S1_DO3')
    a.label('A_S1_NOT3')
    a('s_cmp_eq_u32 s4, 2')
    a('s_cbranch_scc0 A_S1_NO3')
    a(f'v_lshlrev_b32 v{t0}, 4, v{vg}')
    for mt in range(2):
        a(f'ds_read_b128 {v(Yr[mt],4)}, v{t0} offset:{SPEC + 384 + 64*mt}')
    a(f'v_add_u32 v{t2}, {(160 - 96) * 16}, v{vy}')
    a(f'v_cmp_gt_u32 vcc, 4, v{vi}')
    a(f'v_mov_b32 v{t1}, 0x7fffffff')
    a(f'v_cndmask_b32 v{t2}, v{t1}, v{t2}, vcc')
    a('s_waitcnt lgkmcnt(0)')
    for mt in range(2):
        for r in range(4):
            a(f'v_cvt_pk_bf16_f32 v{Bq[mt]+r}, v{Yr[mt]+r}, 0')
    a.label('A_S1_DO3')
    a('s_nop 2')
    step1(2, Bq, Yr, Yi, O, None)
    fin(2, Yr, Yi, O, t2, 0)
    a.label('A_S1_NO3')
    a('s_nop 7')
    for z in range(2):
        Bq, Yr, Yi, O = regs_for(z)
        fin(z, Yr, Yi, O, vy, 256 * z)
    T.mark()
    hi = V.hi
    hi = max(hi, gen_mid(a, T))
    return hi

def gen_mid(a, T):
    usc = ST
    V = VAlloc(1)
    SY, SU, SD, SWO = 36, 40, 60, 44
    lane = V(); t0 = V(); t1 = V(); t2 = V(); vi = V(); vg = V(); vy = V()
    srd(a, SD, S_DBG, 256)
    a(f'''
    s_waitcnt vmcnt(0)
    s_barrier
    v_mov_b32 v{t0}, 1
    v_mov_b32 v{t1}, 0
    s_cmp_eq_u32 s4, 0
    s_cbranch_scc0 M_NOSIG
    s_mov_b64 exec, 1
    buffer_atomic_add v{t0}, v{t1}, s[{SD}:{SD+3}], 0 offen sc1
    s_mov_b64 exec, -1
    ''')
    a.label('M_NOSIG')
    T.mark()
    a(f'''
    v_and_b32 v{lane}, 63, v0
    v_and_b32 v{vi}, 15, v{lane}
    v_lshrrev_b32 v{vg}, 4, v{lane}
    ''')
    mk = V.mark()
    fr = [V(4) for _ in range(5)]
    srd(a, SWO, S_WS, 1536 * 1280, WD_OFF)
    a(f'''
    s_cmp_ge_u32 s2, 48
    s_cbranch_scc1 M_NOWD
    v_lshrrev_b32 v{t0}, 5, v{lane}
    v_lshlrev_b32 v{t0}, 4, v{t0}
    v_bfe_u32 v{t1}, v{lane}, 4, 1
    v_lshl_add_u32 v{t0}, v{t1}, 2, v{t0}
    v_bfe_u32 v{t1}, v{lane}, 2, 2
    v_add_u32 v{t0}, v{t0}, v{t1}
    v_mul_u32_u24 v{t0}, 1280, v{t0}
    v_and_b32 v{t1}, 3, v{lane}
    v_lshl_add_u32 v{t0}, v{t1}, 3, v{t0}
    s_mul_i32 s5, s4, 80
    s_add_u32 s5, s5, {L_WD}
    v_add_u32 v{t0}, s5, v{t0}
    v_lshrrev_b32 v{t1}, 1, v{t1}
    v_mul_u32_u24 v{t1}, 560, v{t1}
    v_add_u32 v{t1}, v{t1}, v{t0}
    s_mul_i32 s5, s4, {48*5120}
    s_mul_i32 s6, s2, 5120
    s_add_u32 s5, s5, s6
    s_add_u32 s6, s5, 4096
    v_lshlrev_b32 v{t2}, 4, v{lane}
    ''')
    for nt in range(5):
        for j in range(2):
            ad = t1 if nt == 2 else t0
            off = 32 * nt + (560 if nt > 2 else 0) + 10240 * j
            a(f'ds_read_b64_tr_b16 {v(fr[nt] + 2*j, 2)}, v{ad} offset:{off}')
    for nt in range(5):
        a(f's_waitcnt lgkmcnt({8 - 2*nt})')
        if nt < 4:
            a(f'buffer_store_dwordx4 {v(fr[nt],4)}, v{t2}, s[{SWO}:{SWO+3}], s5 offen offset:{1024*nt}{usc}')
        else:
            a(f'buffer_store_dwordx4 {v(fr[nt],4)}, v{t2}, s[{SWO}:{SWO+3}], s6 offen{usc}')
    a.label('M_NOWD')
    a('s_nop 1')
    V.release(mk)
    a(f'''
    s_and_b32 s6, s2, 7
    s_cmp_eq_u32 s6, 7
    s_cselect_b32 s7, 6, 5
    s_cmp_ge_u32 s4, s7
    s_cbranch_scc1 M_IDLE
    ''')
    srd(a, SY, S_WS, YBYTES, Y_OFF)
    srd(a, SU, S_WS, YBYTES, U_OFF)
    a(f'''
    s_mul_i32 s6, s6, 5
    s_add_u32 s6, s6, s4
    s_lshl_b32 s6, s6, 6
    s_lshr_b32 s5, s2, 3
    s_mul_i32 s5, s5, {QS}
    s_add_u32 s6, s6, s5
    s_mov_b32 s5, {4*N2S}
    v_mul_lo_u32 v{vy}, v{vg}, s5
    v_lshl_add_u32 v{vy}, v{vi}, 2, v{vy}
    v_add_u32 v{vy}, s6, v{vy}
    ''')
    Wf = [[[[V(4) for _ in range(2)] for _ in range(2)] for _ in range(2)] for _ in range(2)]
    aw = [[V(), V()], [V(), V()]]
    for r in range(Wf[0][0][0][0], Wf[0][0][0][0] + 64):
        a(f'v_mov_b32 v{r}, 0')
    k1i = V()
    a(f'''
    v_and_b32 v{k1i}, 3, v{vi}
    v_and_b32 v{t0}, 1, v{vi}
    v_lshlrev_b32 v{t0}, 1, v{t0}
    v_and_b32 v{t1}, 12, v{vi}
    s_lshl_b32 s5, s4, 4
    v_add3_u32 v{t0}, v{t0}, v{t1}, s5
    v_lshl_add_u32 v{t2}, v{vg}, 4, v{k1i}
    v_lshlrev_b32 v{t2}, 7, v{t2}
    v_add_u32 v{t2}, {L_WF}, v{t2}
    v_lshlrev_b32 v{k1i}, 4, v{k1i}
    ''')
    for Tl in range(2):
        if Tl: a(f'v_add_u32 v{t0}, 2, v{t0}')
        a(f'v_xor_b32 v{t1}, v{t0}, v{k1i}')
        a(f'v_add_u32 v{aw[Tl][0]}, v{t1}, v{t2}')
        a(f'v_xor_b32 v{t1}, 64, v{t1}')
        a(f'v_add_u32 v{aw[Tl][1]}, v{t1}, v{t2}')
    n = 0
    for Tl in range(2):
        for ri in range(2):
            for half in range(2):
                for kt in range(2):
                    for r in range(4):
                        a(f'ds_read_u16_d16_hi v{Wf[Tl][ri][half][kt]+r}, v{aw[Tl][r%2]} offset:{(16*kt + r + 32*half)*512 + 32768*ri}')
    Yd = [[[V(4) for _ in range(2)] for _ in range(2)] for _ in range(2)]
    def yloads():
        n = 0
        for Tl in range(2):
            for par2 in range(2):
                for ks in range(2):
                    for r in range(4):
                        sr = 54 + n % 4; n += 1
                        a(f's_mov_b32 s{sr}, {(32*ks + 16*(r//2) + 2*(r%2) + par2) * N2S}')
                        a(f'buffer_load_dword v{Yd[Tl][par2][ks]+r}, v{vy}, s[{SY}:{SY+3}], s{sr} offen offset:{164*16*Tl} sc1')
    Are = [[[V(4) for _ in range(2)] for _ in range(2)] for _ in range(2)]
    Aim = [[[V(4) for _ in range(2)] for _ in range(2)] for _ in range(2)]
    acc = [[[[V(4) for _ in range(2)] for _ in range(2)] for _ in range(2)] for _ in range(2)]
    tmp = acc[0][0][0][0]
    u0 = V(); u1 = V(); ang = V(2); vsg = V()
    a(f'v_lshlrev_b32 v{t0}, 2, v{vg}')
    a(f'v_cvt_f32_u32 v{t0}, v{t0}')
    a(f'v_and_b32 v{vsg}, 1, v{vi}')
    a(f'v_mul_u32_u24 v{vsg}, 0x8000, v{vsg}')
    a(f'v_lshl_or_b32 v{vsg}, v{vsg}, 16, v{vsg}')
    for kt in range(2):
        a(f'v_add_u32 v{t1}, {16*kt}, v{vi}')
        a(f'v_cvt_f32_u32 v{t1}, v{t1}')
        a(f'v_mul_f32 v{u1}, {f32(1/64)}, v{t1}')
        a(f'v_mul_f32 v{u0}, v{u1}, v{t0}')
        for par2 in range(2):
            for r in range(4):
                p = tmp + 2 * r
                a(f'v_fmamk_f32 v{ang + r % 2}, v{u1}, {f32(16*(r//2) + 2*(r%2) + par2)}, v{u0}')
                a(f'v_cos_f32 v{p}, v{ang + r % 2}')
                a(f'v_sin_f32 v{p+1}, v{ang + r % 2}')
            for r in range(4):
                p = tmp + 2 * r
                a(f'v_cvt_pk_bf16_f32 v{Are[kt][par2][0]+r}, v{p}, v{p+1}')
                a(f'v_cvt_pk_bf16_f32 v{Aim[kt][par2][0]+r}, -v{p+1}, v{p}')
                a(f'v_xor_b32 v{Are[kt][par2][1]+r}, v{vsg}, v{Are[kt][par2][0]+r}')
                a(f'v_xor_b32 v{Aim[kt][par2][1]+r}, v{vsg}, v{Aim[kt][par2][0]+r}')
    a('s_barrier')
    T.mark()
    yloads()
    NEG = 'neg_lo:[0,1] neg_hi:[0,1]'
    def dft(Tl, D):
        for ks in range(2):
            for par2 in range(2):
                for kt in range(2):
                    for c_, M in enumerate((Are, Aim)):
                        d = v(acc[Tl][par2][kt][c_], 4)
                        a(f'v_mfma_f32_16x16x32_bf16 {d}, {v(M[kt][par2][ks],4)}, {v(D[par2][ks],4)}, {"0" if ks == 0 else d}')
    tz = [V(2), V(2), V(2), V(2)]
    def filt(Tl):
        for kt in range(2):
            for r in (0, 2):
                Er = v(acc[Tl][0][kt][0] + r, 2); Or = v(acc[Tl][1][kt][0] + r, 2)
                Ei = v(acc[Tl][0][kt][1] + r, 2); Oi = v(acc[Tl][1][kt][1] + r, 2)
                a(f'v_pk_add_f32 {v(tz[0],2)}, {Er}, {Or}')
                a(f'v_pk_add_f32 {v(tz[1],2)}, {Ei}, {Oi}')
                a(f'v_pk_add_f32 {Er}, {Er}, {Or} {NEG}')
                a(f'v_pk_add_f32 {Ei}, {Ei}, {Oi} {NEG}')
                for half, (xr, xi) in enumerate(((v(tz[0],2), v(tz[1],2)), (Er, Ei))):
                    wr = v(Wf[Tl][0][half][kt] + r, 2); wi = v(Wf[Tl][1][half][kt] + r, 2)
                    zr, zi = (Or, Oi) if half == 0 else (v(tz[2],2), v(tz[3],2))
                    a(f'v_pk_mul_f32 {zr}, {xr}, {wr}')
                    a(f'v_pk_mul_f32 {zi}, {xr}, {wi}')
                    a(f'v_pk_fma_f32 {zr}, {xi}, {wi}, {zr} neg_lo:[1,0,0] neg_hi:[1,0,0]')
                    a(f'v_pk_fma_f32 {zi}, {xi}, {wr}, {zi}')
                    zr0 = acc[Tl][1][kt][0] + r if half == 0 else tz[2]
                    zi0 = acc[Tl][1][kt][1] + r if half == 0 else tz[3]
                    for par2 in range(2):
                        a(f'v_cvt_pk_bf16_f32 v{Yd[Tl][par2][half] + 2*kt + r//2}, v{zr0+par2}, -v{zi0+par2}')
    def fin(Tl):
        n = 0
        for nt in range(2):
            for r in (0, 2):
                Er = v(acc[Tl][0][nt][0] + r, 2); Or = v(acc[Tl][1][nt][0] + r, 2)
                Ei = v(acc[Tl][0][nt][1] + r, 2); Oi = v(acc[Tl][1][nt][1] + r, 2)
                a(f'v_pk_add_f32 {v(tz[0],2)}, {Er}, {Or}')
                a(f'v_pk_add_f32 {v(tz[1],2)}, {Ei}, {Oi}')
                a(f'v_pk_add_f32 {Er}, {Er}, {Or} {NEG}')
                a(f'v_pk_add_f32 {Ei}, {Ei}, {Oi} {NEG}')
                for half in range(2):
                    for j in range(2):
                        ur = (tz[0] if half == 0 else acc[Tl][0][nt][0] + r) + j
                        ui = (tz[1] if half == 0 else acc[Tl][0][nt][1] + r) + j
                        o = acc[Tl][1][nt][half] + r + j
                        a(f'v_cvt_pk_bf16_f32 v{o}, v{ur}, -v{ui}')
                        sr = 54 + n % 4; n += 1
                        a(f's_mov_b32 s{sr}, {(16*nt + r + j + 32*half) * N2S}')
                        a(f'buffer_store_dword v{o}, v{vy}, s[{SU}:{SU+3}], s{sr} offen offset:{164*16*Tl}{usc}')
    a('s_waitcnt vmcnt(16) lgkmcnt(0)')
    T.mark()
    dft(0, Yd[0])
    a('s_waitcnt vmcnt(0)')
    dft(1, Yd[1])
    filt(0)
    dft(0, Yd[0])
    filt(1)
    dft(1, Yd[1])
    fin(0)
    fin(1)
    if T.n:
        a('s_waitcnt vmcnt(0)')
        T.mark()
        T.flush(t0, t1)
    a('s_endpgm')
    a.label('M_IDLE')
    a.hist = []
    a('s_cmp_eq_u32 s4, 7')
    a('s_cbranch_scc0 M_POLLED')
    a(f'v_mov_b32 v{t1}, 0')
    a.label('M_POLL')
    a(f'buffer_load_dword v{t0}, v{t1}, s[{SD}:{SD+3}], 0 offen sc1')
    a('s_waitcnt vmcnt(0)')
    a(f'v_readfirstlane_b32 s5, v{t0}')
    a('s_nop 3')
    a('s_cmp_ge_u32 s5, 64')
    a('s_cbranch_scc1 M_POLLED')
    a('s_sleep 1')
    a('s_branch M_POLL')
    a.label('M_POLLED')
    a('s_barrier')
    a('s_endpgm')
    return V.hi
```

```python
from asm import *
from stamp import Stamps
import os
X = os.environ.get('X', '').split(',')
IN = '' if 'inplain' in X else ' nt'
ST = ' nt' if 'stnt' in X else (' sc1' if 'stsc1' in X else '')
LD = ' nt' if 'ldnt' in X else ''

H_OFF, Y_OFF, U_OFF = 0, 8 << 20, 12 << 20
KK = 328
ONES = 0x3F803F80

S_X, S_WR, S_WI, S_WG, S_WU, S_WD, S_OUT, S_DBG, S_WS = 16, 18, 20, 24, 26, 28, 30, 32, 34

def srd(a, d, base, nbytes, off=0):
    if off:
        a(f's_add_u32 s{d}, s{base}, {off}')
        a(f's_addc_u32 s{d+1}, s{base+1}, 0')
    else:
        a(f's_mov_b32 s{d}, s{base}')
        a(f's_mov_b32 s{d+1}, s{base+1}')
    a(f's_mov_b32 s{d+2}, {nbytes}')
    a(f's_mov_b32 s{d+3}, 0x00020000')

def bf16r(a, d, x):
    a(f'v_cvt_pk_bf16_f32 v{d}, v{x}, v{x}')
    a(f'v_and_b32 v{d}, 0xffff0000, v{d}')

def ln_scalars(a, vsum, vsq_or_var, vmb, vr, t0, two_pass=False):
    bf16r(a, vmb, vsum)
    bf16r(a, t0, vsq_or_var)
    a(f'v_add_f32 v{t0}, {f32(1e-5)}, v{t0}')
    bf16r(a, t0, t0)
    a(f'v_sqrt_f32 v{t0}, v{t0}')
    bf16r(a, t0, t0)
    a(f'v_rcp_f32 v{vr}, v{t0}')

class VM:
    def __init__(self): self.ops = []
    def issue(self, tag): self.ops.append(tag)
    def wait(self, tags):
        last = max([i for i, t in enumerate(self.ops) if t in tags], default=-1)
        return min(63, len(self.ops) - 1 - last)

def gen_g(a, NST=20):
    V = VAlloc(1)
    T = Stamps(a)
    T.mark()
    SX, SG, SU, SH, SP = 36, 40, 44, 48, 64
    sMB, sNB, sM0, sOA, sOW, sT, sWM, sWN, sONE, sM0X = 52, 53, 54, 55, 56, 57, 58, 59, 60, 61
    WB = 65536
    vm = VM()
    NPRE = 4 if 'pre4' in X else 0
    hsc = ST
    srd(a, SX, S_X, 2048 * 1280)
    srd(a, SG, S_WG, 640 * 3072)
    srd(a, SU, S_WU, 640 * 3072)
    a(f"""
    s_and_b32 s5, s3, 7
    s_lshr_b32 s6, s3, 3
    s_lshr_b32 s7, s5, 2
    s_lshl_b32 s7, s7, 3
    s_and_b32 s8, s6, 7
    s_add_u32 s{sMB}, s7, s8
    s_and_b32 s7, s5, 3
    s_mul_i32 s7, s7, 3
    s_lshr_b32 s8, s6, 3
    s_add_u32 s{sNB}, s7, s8
    s_lshr_b32 s{sWM}, s4, 2
    s_and_b32 s{sWN}, s4, 3
    s_lshl_b32 s{sM0}, s4, 10
    s_lshl_b32 s{sM0X}, s4, 11
    s_mov_b32 s{sOA}, 0
    s_mov_b32 s{sOW}, 0
    """)
    lane = V(); t0 = V(); t1 = V(); t2 = V(); vA = [V(), V()]; vW = V()
    a(f'v_and_b32 v{lane}, 63, v0')
    a(f"""
    s_and_b32 s5, s4, 1
    s_lshl_b32 s5, s5, 10
    s_lshl_b32 s6, s{sMB}, 2
    s_add_u32 s5, s5, s6
    s_lshr_b32 s6, s4, 1
    s_add_u32 s5, s5, s6
    s_mul_i32 s5, s5, 1280
    s_mov_b32 s6, {64*1280}
    v_lshrrev_b32 v{t0}, 3, v{lane}
    v_mul_lo_u32 v{t0}, v{t0}, s6
    v_and_b32 v{t1}, 7, v{lane}
    v_lshrrev_b32 v{t2}, 4, v{lane}
    v_xor_b32 v{t1}, v{t1}, v{t2}
    v_lshlrev_b32 v{t1}, 4, v{t1}
    v_add3_u32 v{vA[0]}, v{t0}, v{t1}, s5
    v_xor_b32 v{t1}, 64, v{t1}
    s_add_u32 s5, s5, {512*1280}
    v_add3_u32 v{vA[1]}, v{t0}, v{t1}, s5
    s_mul_i32 s5, s4, {4*3072}
    s_lshl_b32 s6, s{sNB}, 8
    s_add_u32 s5, s5, s6
    v_mul_u32_u24 v{t0}, 3072, v{t2}
    v_lshlrev_b32 v{t1}, 2, v{t2}
    v_and_b32 v{vW}, 15, v{lane}
    v_xor_b32 v{t1}, v{t1}, v{vW}
    v_lshlrev_b32 v{t1}, 4, v{t1}
    v_add3_u32 v{vW}, v{t0}, v{t1}, s5
    """)
    def dma_x(xi):
        c, j = xi // 2, xi % 2
        L = [f's_add_u32 m0, s{sM0X}, {(c % 4) * 16384 + 1024 * j}', ('x', c, f'buffer_load_dwordx4 v{vA[j]}, s[{SX}:{SX+3}], s{sOA} offen{IN} lds')]
        if j == 1: L.append(f's_add_u32 s{sOA}, s{sOA}, 128')
        return L
    def dma_w(st, m):
        b = WB + (st % 6) * 16384 + 8192 * m
        S_ = (SG, SU)[m]
        L = [f's_add_u32 m0, s{sM0}, {b}', ('w', st, f'buffer_load_dwordx4 v{vW}, s[{S_}:{S_+3}], s{sOW} offen{IN} lds')]
        if m == 1: L.append(f's_add_u32 s{sOW}, s{sOW}, {32*3072}')
        return L
    def emit(L):
        for q in L:
            if isinstance(q, tuple):
                vm.issue(q[:2]); a(q[2])
            else: a(q)
    emit(dma_x(0)); emit(dma_x(1))
    for st in range(2):
        emit(dma_w(st, 0)); emit(dma_w(st, 1))
    pend = []
    for st in range(2, NST):
        if st % 2 == 0:
            pend += [('x', st), ('x', st + 1)]
        pend += [('w', st, 0), ('w', st, 1)]
    def pop(done):
        for i, o in enumerate(pend):
            ok = (o[1] - o[1] % 2 - 6 <= done) if o[0] == 'x' else (o[1] - 5 <= done or o[1] <= 5)
            if o[0] == 'x' and o[1] <= 7: ok = True
            if ok and all(q[0] != o[0] for q in pend[:i]):
                pend.pop(i)
                return dma_x(o[1]) if o[0] == 'x' else dma_w(o[1], o[2])
        return []
    for _once in range(1):
        if 'nopf' not in X:
            pf = V(); pd = V()
            a(f"""
            s_lshr_b32 s6, s3, 3
            s_lshl_b32 s6, s6, 3
            s_add_u32 s6, s6, s4
            s_cmp_ge_u32 s6, 96
            s_cbranch_scc1 G_PFW
            s_lshr_b32 s7, s6, 4
            s_lshl_b32 s7, s7, 7
            s_and_b32 s8, s6, 15
            s_mul_i32 s8, s8, 163840
            s_add_u32 s7, s7, s8
            s_bfe_u32 s8, s3, 0x10002
            s_mul_i32 s8, s8, 40960
            s_add_u32 s7, s7, s8
            s_add_u32 s7, s7, 512
            v_and_b32 v{t0}, 31, v{lane}
            v_mul_u32_u24 v{pf}, 1280, v{t0}
            v_lshrrev_b32 v{t0}, 5, v{lane}
            v_mul_u32_u24 v{t0}, 81920, v{t0}
            v_add_u32 v{pf}, v{pf}, v{t0}
            s_mov_b64 s[{SP}:{SP+1}], s[{SX}:{SX+1}]
            s_mov_b32 s{SP+2}, {2048*1280}
            s_branch G_PFGO
            """)
            a.label('G_PFW')
            a(f"""
            s_sub_u32 s6, s6, 96
            s_bitcmp1_b32 s6, 0
            s_cselect_b32 s{SP}, s{SU}, s{SG}
            s_cselect_b32 s{SP+1}, s{SU+1}, s{SG+1}
            s_mov_b32 s{SP+2}, {640*3072}
            s_lshr_b32 s6, s6, 1
            s_lshl_b32 s6, s6, 6
            v_add_u32 v{t0}, s6, v{lane}
            s_mov_b32 s7, 43691
            v_mul_u32_u24 v{t1}, s7, v{t0}
            v_lshrrev_b32 v{t1}, 18, v{t1}
            v_mul_u32_u24 v{pf}, 6, v{t1}
            v_sub_u32 v{t0}, v{t0}, v{pf}
            v_mul_u32_u24 v{t1}, 3072, v{t1}
            v_lshl_add_u32 v{pf}, v{t0}, 7, v{t1}
            s_and_b32 s7, s3, 3
            s_mul_i32 s7, s7, 768
            s_add_u32 s7, s7, {160*3072}
            """)
            a.label('G_PFGO')
            a(f's_mov_b32 s{SP+3}, 0x00020000')
            emit([('p', 0, f'buffer_load_dword v{pd}, v{pf}, s[{SP}:{SP+3}], s7 offen{IN}')])
    srd(a, SH, S_WS, 2048 * 3072, H_OFF)
    ax = [[V() for _ in range(4)] for _ in range(2)]
    aw = [[[V() for _ in range(2)] for _ in range(2)] for _ in range(2)]
    h = V(); l32 = V()
    a(f"""
    v_lshrrev_b32 v{h}, 5, v{lane}
    v_and_b32 v{l32}, 31, v{lane}
    v_bfe_u32 v{t0}, v{lane}, 1, 3
    v_xor_b32 v{t0}, v{t0}, v{h}
    s_and_b32 s5, s{sWN}, 2
    v_xor_b32 v{t0}, s5, v{t0}
    v_lshlrev_b32 v{t0}, 4, v{t0}
    v_lshl_add_u32 v{t0}, v{l32}, 7, v{t0}
    s_lshl_b32 s5, s{sWM}, 13
    s_and_b32 s6, s{sWN}, 1
    s_lshl_b32 s6, s6, 12
    s_add_u32 s5, s5, s6
    v_add_u32 v{ax[0][0]}, s5, v{t0}
    v_xor_b32 v{ax[0][1]}, 32, v{ax[0][0]}
    v_xor_b32 v{ax[0][2]}, 64, v{ax[0][0]}
    v_xor_b32 v{ax[0][3]}, 0x60, v{ax[0][0]}
    """)
    for i in range(4):
        a(f'v_xor_b32 v{ax[1][i]}, 0x1000, v{ax[0][i]}')
    a(f"""
    v_bfe_u32 v{t0}, v{lane}, 2, 2
    v_lshl_add_u32 v{t1}, v{h}, 3, v{t0}
    v_lshlrev_b32 v{t1}, 8, v{t1}
    v_xor_b32 v{t0}, s{sWN}, v{t0}
    v_lshl_add_u32 v{t1}, v{t0}, 6, v{t1}
    v_bfe_u32 v{t0}, v{lane}, 4, 1
    v_lshl_add_u32 v{t1}, v{t0}, 5, v{t1}
    v_and_b32 v{t0}, 3, v{lane}
    v_lshl_add_u32 v{t1}, v{t0}, 3, v{t1}
    s_lshr_b32 s5, s{sWN}, 1
    s_lshl_b32 s5, s5, 12
    s_lshl_b32 s6, s{sWM}, 13
    s_add_u32 s5, s5, s6
    s_add_u32 s5, s5, {WB}
    v_add_u32 v{aw[0][0][0]}, s5, v{t1}
    v_xor_b32 v{aw[0][1][0]}, 0x2000, v{aw[0][0][0]}
    v_xor_b32 v{aw[0][0][1]}, 0x1000, v{aw[0][0][0]}
    v_xor_b32 v{aw[0][1][1]}, 0x1000, v{aw[0][1][0]}
    """)
    for i in range(2):
        for j in range(2):
            a(f'v_add_u32 v{aw[1][i][j]}, {3*16384}, v{aw[0][i][j]}')
    acc = [[V(16, 4) for _ in range(2)] for _ in range(2)]
    fx = [[V(4) for _ in range(2)] for _ in range(2)]
    fw = [[V(4) for _ in range(2)] for _ in range(2)]
    vsum = V(2); vsq = V(2); tp = [V(2), V(2)]; sMASK = sONE
    vcs = V(4); sel = V(4)
    a(f's_mov_b32 s{sMASK}, 0xffff0000')
    for r in (vsum, vsq):
        a(f'v_mov_b32 v{r}, 0\n v_mov_b32 v{r+1}, 0')
    a(f"""
    v_lshrrev_b32 v{t0}, 4, v{lane}
    v_xor_b32 v{t0}, v{t0}, v{lane}
    v_and_b32 v{t0}, 1, v{t0}
    v_cmp_eq_u32 vcc, 0, v{t0}
    v_mov_b32 v{t1}, {ONES}
    v_cndmask_b32 v{sel}, 0, v{t1}, vcc
    v_mov_b32 v{sel+1}, v{sel}
    v_mov_b32 v{sel+2}, v{sel}
    v_mov_b32 v{sel+3}, v{sel}
    """)
    def reads(u):
        st, step = u // 2, u % 2
        b = st % 6
        bg, off = b // 3, (b % 3) * 16384
        xo = ((st // 2) % 4) * 16384
        ps = u % 2
        L = []
        for tau in range(2):
            L.append(f'ds_read_b64_tr_b16 {v(fw[ps][tau], 2)}, v{aw[bg][tau][step]} offset:{off}')
            L.append(f'ds_read_b64_tr_b16 {v(fw[ps][tau] + 2, 2)}, v{aw[bg][tau][step]} offset:{off + 1024}')
            L.append(f'ds_read_b128 {v(fx[ps][tau], 4)}, v{ax[tau][2 * (st % 2) + step]} offset:{xo}')
        return L
    def stat_ops(ps, i):
        r = fx[ps][0] + i; t = tp[i % 2]
        return [f'v_lshlrev_b32 v{t}, 16, v{r}', f'v_and_b32 v{t+1}, s{sMASK}, v{r}', f'v_add_f32 v{vsum}, v{vsum}, v{t}', f'v_add_f32 v{vsum+1}, v{vsum+1}, v{t+1}',
                f'v_fmac_f32 v{vsq}, v{t}, v{t}', f'v_fmac_f32 v{vsq+1}, v{t+1}, v{t+1}']
    def step(u, fill):
        ps = u % 2
        order = [(0, 0), (1, 1), (0, 1), (1, 0)]
        for k, (sg, tau) in enumerate(order):
            if k == 0: a('s_waitcnt lgkmcnt(3)')
            if k == 1: a(f's_waitcnt lgkmcnt({sum(1 for q in fill[0] if str(q).startswith("ds_"))})')
            c = '0' if u == 0 else v(acc[sg][tau], 16)
            a(f'v_mfma_f32_32x32x16_bf16 {v(acc[sg][tau], 16)}, {v(fw[ps][tau], 4)}, {v(fx[ps][sg], 4)}, {c}')
            emit(fill[k])
        c = '0' if u == 0 else v(vcs, 4)
        a(f'v_mfma_f32_16x16x32_bf16 {v(vcs, 4)}, {v(fw[ps][0], 4)}, {v(sel, 4)}, {c}')
        emit(fill[4])
    for _ in range(NPRE): emit(pop(-1))
    T.mark()
    a(f's_waitcnt vmcnt({vm.wait({("x", 0), ("w", 0)})})')
    a('s_barrier')
    T.mark()
    a('s_waitcnt lgkmcnt(0)')
    emit(reads(0))
    for st in range(NST):
        R = reads(2 * st + 1)
        S = [stat_ops(0, i) for i in range(4)]
        step(2 * st, [R[0:3], R[3:6] + S[0], S[1] + pop(st - 1), S[2] + pop(st - 1), S[3] + pop(st - 1)])
        fill = [[], [], [], [], []]
        if st + 1 < NST:
            a(f's_waitcnt vmcnt({vm.wait({("x", (st + 1) // 2), ("w", st + 1)})})')
            a('s_barrier')
            R = reads(2 * st + 2)
            fill = [R[0:3], R[3:6], pop(st), pop(st), pop(st)]
        step(2 * st + 1, fill)
    T.mark()
    a('s_waitcnt lgkmcnt(0)')
    a(f'v_add_f32 v{vsum}, v{vsum}, v{vsum+1}\n v_add_f32 v{vsum+1}, v{vsq}, v{vsq+1}')
    for r in (vsum, vsum + 1):
        a(f'v_mov_b32 v{t0}, v{r}')
        a(f'v_permlane32_swap_b32 v{r}, v{t0}')
        a(f'v_add_f32 v{r}, v{r}, v{t0}')
    a('s_barrier')
    a(f'''
    s_lshl_b32 s5, s{sWM}, 10
    s_and_b32 s6, s{sWN}, 1
    s_lshl_b32 s6, s6, 9
    s_add_u32 s5, s5, s6
    s_lshr_b32 s7, s{sWN}, 1
    s_lshl_b32 s7, s7, 8
    v_lshlrev_b32 v{t0}, 3, v{l32}
    v_add_u32 v{t1}, s5, v{t0}
    v_add_u32 v{t2}, s7, v{t1}
    ds_write_b64 v{t2}, {v(vsum, 2)}
    s_lshl_b32 s6, s{sWM}, 9
    s_lshl_b32 s7, s{sWN}, 7
    s_add_u32 s6, s6, s7
    s_add_u32 s6, s6, 4096
    v_and_b32 v{t2}, 1, v{lane}
    v_lshl_add_u32 v{t2}, v{t2}, 6, s6
    v_and_b32 v{t0}, 48, v{lane}
    v_add_u32 v{t2}, v{t2}, v{t0}
    ds_write_b128 v{t2}, {v(vcs, 4)}
    s_waitcnt lgkmcnt(0)
    s_barrier
    ''')
    st = [[V(2), V(2)] for _ in range(2)]
    cs = [V(16, 4) for _ in range(2)]
    a(f'ds_read_b64 {v(st[0][0], 2)}, v{t1}')
    a(f'ds_read_b64 {v(st[0][1], 2)}, v{t1} offset:256')
    a(f'v_xor_b32 v{t1}, 0x200, v{t1}')
    a(f'ds_read_b64 {v(st[1][0], 2)}, v{t1}')
    a(f'ds_read_b64 {v(st[1][1], 2)}, v{t1} offset:256')
    a(f'v_lshl_add_u32 v{t2}, v{h}, 4, s6')
    for q in range(4):
        a(f'ds_read_b128 {v(cs[0] + 4 * q, 4)}, v{t2} offset:{32 * q}')
    a(f'v_xor_b32 v{t2}, 0x200, v{t2}')
    for q in range(4):
        a(f'ds_read_b128 {v(cs[1] + 4 * q, 4)}, v{t2} offset:{32 * q}')
    vst = V(); mb_ = [V(2), V(2)]
    a(f'''
    s_lshl_b32 s5, s{sMB}, 2
    s_lshl_b32 s6, s{sWM}, 1
    s_add_u32 s5, s5, s6
    s_and_b32 s6, s{sWN}, 1
    s_add_u32 s7, s5, s6
    s_xor_b32 s8, s7, 1
    s_mul_i32 s7, s7, {2*49152}
    s_mul_i32 s8, s8, {2*49152}
    s_lshl_b32 s5, s{sNB}, 2
    s_add_u32 s5, s5, s{sWN}
    s_lshl_b32 s5, s5, 10
    v_bfe_u32 v{t0}, v{lane}, 4, 1
    v_mul_u32_u24 v{t0}, 49152, v{t0}
    v_lshl_add_u32 v{t0}, v{h}, 8, v{t0}
    v_and_b32 v{vst}, 15, v{lane}
    v_lshl_add_u32 v{vst}, v{vst}, 4, v{t0}
    v_add_u32 v{vst}, s5, v{vst}
    s_waitcnt lgkmcnt(8)
    ''')
    for sg in range(2):
        s0, s1 = st[sg]
        a(f'v_pk_add_f32 {v(s0, 2)}, {v(s0, 2)}, {v(s1, 2)}')
        a(f'v_mul_f32 v{s0}, {f32(1/640)}, v{s0}')
        a(f'v_mul_f32 v{s0+1}, {f32(1/640)}, v{s0+1}')
        a(f'v_fma_f32 v{s0+1}, -v{s0}, v{s0}, v{s0+1}')
        a(f'v_max_f32 v{s0+1}, 0, v{s0+1}')
        ln_scalars(a, s0, s0 + 1, mb_[sg], mb_[sg] + 1, t0)
        a(f'v_mul_f32 v{mb_[sg]+1}, v{mb_[sg]+1}, v{mb_[sg]+1}')
    a('s_waitcnt lgkmcnt(0)')
    for sg in range(2):
        m = mb_[sg]
        for i in range(0, 16, 2):
            for tau in range(2):
                d = v(acc[sg][tau] + i, 2)
                a(f'v_pk_fma_f32 {d}, {v(cs[tau] + i, 2)}, {v(m, 2)}, {d} op_sel_hi:[1,0,1] neg_lo:[0,1,0] neg_hi:[0,1,0]')
            d = v(acc[sg][0] + i, 2)
            a(f'v_pk_mul_f32 {d}, {d}, {v(acc[sg][1] + i, 2)}')
            a(f'v_pk_mul_f32 {d}, {d}, {v(m, 2)} op_sel:[0,1] op_sel_hi:[1,1]')
            a(f'v_cvt_pk_bf16_f32 v{acc[sg][1] + i // 2}, v{acc[sg][0] + i}, v{acc[sg][0] + i + 1}') if False else None
        for i in range(0, 16, 2):
            a(f'v_cvt_pk_bf16_f32 v{acc[sg][1] + i // 2}, v{acc[sg][0] + i}, v{acc[sg][0] + i + 1}')
        so = 's7' if sg == 0 else 's8'
        for p in range(2):
            a(f'buffer_store_dwordx4 {v(acc[sg][1] + 4 * p, 4)}, v{vst}, s[{SH}:{SH+3}], {so} offen offset:{512 * p}{hsc}')
    T.mark()
    a('s_waitcnt vmcnt(0)')
    T.mark()
    T.flush(t0, t1)
    a('s_endpgm')
    return V.hi
```

```python
from asm import *
from stamp import Stamps
from k1g import srd, S_X, S_WD, S_OUT, S_WS, H_OFF, U_OFF, KK
from k1a import N2S, QS, YBYTES, WD_OFF
import os
from k1g import X, IN, ST, LD
SLOT = 5120; RING = 6 * SLOT; PART = 4 * RING
LDS = PART + 40960
OST = ' nt' if 'ont' in X else ''
PS = 336

def gen_k2(a):
    NPF = 0
    T = Stamps(a, 2)
    T.mark()
    SH, SW, SU, SX, SO = 36, 40, 44, 48, 60
    sMB, sNB, sWV = 52, 53, 54
    srd(a, SH, S_WS, 2048 * 3072, H_OFF)
    srd(a, SW, S_WS, 1536 * 1280, WD_OFF)
    srd(a, SU, S_WS, YBYTES, U_OFF)
    srd(a, SX, S_X, 2048 * 1280)
    srd(a, SO, S_OUT, 2048 * 1280)
    a(f'''
    s_and_b32 s5, s2, 7
    s_lshr_b32 s6, s2, 3
    s_lshr_b32 s7, s5, 1
    s_lshl_b32 s7, s7, 3
    s_and_b32 s8, s6, 7
    s_add_u32 s{sMB}, s7, s8
    s_and_b32 s7, s5, 1
    s_lshl_b32 s7, s7, 2
    s_lshr_b32 s8, s6, 3
    s_add_u32 s{sNB}, s7, s8
    s_and_b32 s{sWV}, s4, 3
    ''')
    V = VAlloc(1)
    lane = V(); t0 = V(); t1 = V(); t2 = V(); vi = V(); vg = V()
    a(f'''
    v_and_b32 v{lane}, 63, v0
    v_and_b32 v{vi}, 15, v{lane}
    v_lshrrev_b32 v{vg}, 4, v{lane}
    ''')
    base_mark = V.mark()
    a('s_cmp_ge_u32 s4, 4')
    a('s_cbranch_scc1 K2_AF')
    sM0, sOH, sOW = 55, 56, 57
    vh = V(); vr = V()
    a(f'''
    s_mul_i32 s5, s{sMB}, {4*49152}
    s_mul_i32 s6, s{sWV}, {12*1024}
    s_add_u32 s{sOH}, s5, s6
    v_lshlrev_b32 v{vh}, 4, v{lane}
    s_mul_i32 s{sOW}, s{sWV}, {12*5120}
    s_mul_i32 s5, s{sNB}, {48*5120}
    s_add_u32 s{sOW}, s{sOW}, s5
    s_mul_i32 s{sM0}, s{sWV}, {RING}
    s_mov_b32 s8, 6554
    ''')
    vh2 = [vh, V(), V(), V()]
    for m in range(1, 4):
        a(f'v_add_u32 v{vh2[m]}, {49152*m}, v{vh}')
    acc = [[V(4) for _ in range(5)] for _ in range(4)]
    hf = [[V(4) for _ in range(4)] for _ in range(6)]
    wf = [[V(4) for _ in range(5)] for _ in range(2)]
    def loads(i):
        L = []
        sl = i % 6
        for n in range(5):
            if n == 0: L.append([f's_add_u32 m0, s{sM0}, {sl*SLOT}', f'buffer_load_dwordx4 v{vh}, s[{SW}:{SW+3}], s{sOW} offen{LD} lds'])
            elif n < 4: L.append([f'buffer_load_dwordx4 v{vh}, s[{SW}:{SW+3}], s{sOW} offen offset:{1024*n}{LD} lds'])
            else: L.append([f's_add_u32 m0, s{sM0}, {sl*SLOT + 2048}', f's_add_u32 s{sOW}, s{sOW}, 2048', f'buffer_load_dwordx4 v{vh}, s[{SW}:{SW+3}], s{sOW} offen offset:2048{LD} lds'])
        L[-1].append(f's_add_u32 s{sOW}, s{sOW}, 3072')
        for m in range(4):
            L.append([f'buffer_load_dwordx4 {v(hf[sl][m],4)}, v{vh2[m]}, s[{SH}:{SH+3}], s{sOH} offen{LD}'])
        L[-1].append(f's_add_u32 s{sOH}, s{sOH}, 1024')
        return L
    for i in range(6):
        for g_ in loads(i):
            for q in g_: a(q)
    a(f'v_add_u32 v{vr}, s{sM0}, v{vh}')
    hiD = V.hi
    T.mark()
    def trs(i):
        L = []
        for nt in range(5):
            L.append(f'ds_read_b128 {v(wf[i%2][nt], 4)}, v{vr} offset:{(i%6)*SLOT + 1024*nt}')
        return L
    a('s_waitcnt vmcnt(49)')
    T.mark()
    for q in trs(0): a(q)
    issued = 6
    for i in range(12):
        if i + 1 < 12:
            n_out = (issued - (i + 2)) * 9 + 4
        else:
            n_out = 0
        a(f's_waitcnt vmcnt({n_out}) lgkmcnt(0)')
        fill = []
        if i + 1 < 12:
            fill += [[q] for q in trs(i + 1)]
        post = []
        if i + 6 < 12:
            L = loads(i + 6)
            fill += L[:5]
            post = L[5:]
            issued += 1
        k = 0
        for m in range(4):
            for nt in range(5):
                c = '0' if i == 0 else v(acc[m][nt], 4)
                a(f'v_mfma_f32_16x16x32_bf16 {v(acc[m][nt],4)}, {v(wf[i%2][nt],4)}, {v(hf[i%6][m],4)}, {c}')
                if k < len(fill):
                    for q in fill[k]: a(q)
                k += 1
        for g_ in post:
            for q in g_: a(q)
    T.mark()
    a(f'''
    v_mul_u32_u24 v{t0}, {PS}, v{vi}
    v_lshl_add_u32 v{t0}, v{vg}, 4, v{t0}
    v_add_u32 v{t0}, s{sM0}, v{t0}
    ''')
    for m in range(4):
        for nt in range(5):
            a(f'ds_write_b128 v{t0}, {v(acc[m][nt],4)} offset:{16*m*PS + 64*nt}')
    a('s_branch K2_FIN')
    a.label('K2_AF')
    a.hist = []
    T.n = min(T.n, 1)
    a('s_setprio 3')
    V.release(base_mark)
    sPAR, sT0 = 55, 56
    vu = V()
    a(f'''
    s_lshr_b32 s{sPAR}, s{sWV}, 1
    s_and_b32 s{sT0}, s{sWV}, 1
    s_mul_i32 s{sT0}, s{sT0}, 5
    s_mul_i32 s5, s{sMB}, {2*N2S}
    s_mul_i32 s6, s{sPAR}, {164*16}
    s_add_u32 s5, s5, s6
    s_lshl_b32 s6, s{sT0}, 8
    s_add_u32 s5, s5, s6
    v_mul_u32_u24 v{vu}, {QS}, v{vg}
    v_lshl_add_u32 v{vu}, v{vi}, 4, v{vu}
    v_add_u32 v{vu}, s5, v{vu}
    s_mov_b32 s8, {4*QS}
    s_mov_b32 s9, {N2S}
    s_mov_b32 s10, {N2S + 4*QS}
    ''')
    uf = [[[V(4) for _ in range(2)] for _ in range(2)] for _ in range(3)]
    so_ = [['0', 's8'], ['s9', 's10']]
    def uload(z_, ring, off):
        for aa in range(2):
            for kp in range(2):
                a(f'buffer_load_dwordx4 {v(uf[ring][aa][kp],4)}, v{vu}, s[{SU}:{SU+3}], {so_[aa][kp]} offen offset:{off}{LD}')
    uload(-1, 2, 160 * 16)
    uload(0, 0, 0)
    uload(1, 1, 256)
    T6 = [[[[V(4) for _ in range(2)] for _ in range(2)] for _ in range(2)] for _ in range(2)]
    accA = [[V(4) for _ in range(3)] for _ in range(4)]
    D6 = [[V(4) for _ in range(2)] for _ in range(2)]
    zf = [V(4) for _ in range(4)]
    G = [V(4) for _ in range(3)]
    nyq = V(4)
    gs = [[V(2) for _ in range(4)] for _ in range(3)]
    rot = [V(2) for _ in range(3)]
    tq = V(2); kf = V();
    u0, u1, ang, p = accA[0][0], accA[0][0] + 1, accA[0][0] + 2, accA[0][1]
    a(f'v_lshlrev_b32 v{t2}, 2, v{vg}')
    a(f'v_cvt_f32_u32 v{t2}, v{t2}')
    a(f's_lshl_b32 s6, s{sMB}, 1')
    for aa in range(2):
        for nh in range(2):
            a(f's_add_u32 s5, s6, {1024*nh + aa}')
            a(f'v_lshl_add_u32 v{u1}, v{vi}, 6, s5')
            a(f'v_cvt_f32_u32 v{u1}, v{u1}')
            a(f'v_mul_f32 v{u1}, {f32(1/2048)}, v{u1}')
            a(f'v_mul_f32 v{u0}, v{t2}, v{u1}')
            for kp in range(2):
                for r in range(4):
                    a(f'v_fmamk_f32 v{ang + r % 2}, v{u1}, {f32(16*kp + r)}, v{u0}')
                    a(f'v_cos_f32 v{p+2*r}, v{ang + r % 2}')
                    a(f'v_sin_f32 v{p+2*r+1}, v{ang + r % 2}')
                for r in range(4):
                    a(f'v_cvt_pk_bf16_f32 v{T6[aa][nh][kp][0]+r}, v{p+2*r}, -v{p+2*r+1}')
                    a(f'v_cvt_pk_bf16_f32 v{T6[aa][nh][kp][1]+r}, v{p+2*r+1}, v{p+2*r}')
    a(f'''
    s_lshl_b32 s5, s{sT0}, 5
    s_add_u32 s5, s5, s{sPAR}
    v_lshl_add_u32 v{kf}, v{vg}, 3, s5
    v_cvt_f32_u32 v{kf}, v{kf}
    s_mul_i32 s6, s{sNB}, 40
    v_add_u32 v{t1}, s6, v{vi}
    v_cvt_f32_u32 v{t1}, v{t1}
    ''')
    T.mark()
    for nt in range(3):
        a(f'v_add_f32 v{t2}, {f32(16.0*nt)}, v{t1}')
        a(f'v_mul_f32 v{tq}, {f32(32.0/640)}, v{t2}')
        a(f'v_fract_f32 v{tq}, v{tq}')
        a(f'v_cos_f32 v{rot[nt]}, v{tq}')
        a(f'v_sin_f32 v{rot[nt]+1}, v{tq}')
        for r in range(4):
            a(f'v_add_f32 v{tq+1}, {f32(2.0*r)}, v{kf}')
            a(f'v_mul_f32 v{tq+1}, v{tq+1}, v{t2}')
            a(f'v_mul_f32 v{tq+1}, {f32(1/640)}, v{tq+1}')
            a(f'v_fract_f32 v{tq+1}, v{tq+1}')
            a(f'v_cos_f32 v{gs[nt][r]}, v{tq+1}')
            a(f'v_sin_f32 v{gs[nt][r]+1}, v{tq+1}')
    def gpack():
        L = []
        for nt in range(3):
            for r in range(4):
                L.append(f'v_cvt_pk_bf16_f32 v{G[nt]+r}, v{gs[nt][r]}, -v{gs[nt][r]+1}')
        return L
    def grot():
        L = []
        for nt in range(3):
            C, S = rot[nt], rot[nt] + 1
            for r in range(4):
                c, s_ = gs[nt][r], gs[nt][r] + 1
                t = tq + r % 2
                L += [f'v_mul_f32 v{t}, v{s_}, v{S}', f'v_mul_f32 v{s_}, v{s_}, v{C}', f'v_fmac_f32 v{s_}, v{c}, v{S}', f'v_fma_f32 v{c}, v{c}, v{C}, -v{t}']
        return L
    a(f's_cmp_eq_u32 s{sWV}, 0')
    a('s_cbranch_scc0 K2_NONYQ')
    a(f's_waitcnt vmcnt({8 + NPF})')
    for aa in range(2):
        for nh in range(2):
            d = v(zf[2*aa+nh], 4)
            for kp in range(2):
                a(f'v_mfma_f32_16x16x32_bf16 {d}, {v(uf[2][aa][kp],4)}, {v(T6[aa][nh][kp][0],4)}, {"0" if kp == 0 else d}')
    for m in range(4):
        a(f'v_mul_f32 v{nyq+m}, 0.5, v{zf[m]}')
    a.label('K2_NONYQ')
    a('s_nop 4')
    a(f's_waitcnt vmcnt({8 + NPF})')
    uload(2, 2, 512)
    a(f'''
    v_cmp_gt_u32 s[58:59], 16, v{lane}
    s_cmp_eq_u32 s{sWV}, 0
    s_cselect_b64 s[58:59], s[58:59], 0
    ''')
    for z_ in range(5):
        ring = z_ % 3
        a(f's_waitcnt vmcnt({4 * min(2, 4 - z_) + (NPF if z_ < 2 else 0)})')
        fillv = (grot() if z_ > 0 else []) + gpack()
        fi = 0
        nper = (len(fillv) + 15) // 16
        for aa in range(2):
            for kp in range(2):
                for nh in range(2):
                    for c_ in range(2):
                        d = v(D6[nh][c_], 4)
                        a(f'v_mfma_f32_16x16x32_bf16 {d}, {v(uf[ring][aa][kp],4)}, {v(T6[aa][nh][kp][c_],4)}, {"0" if kp == 0 else d}')
                        for q in fillv[fi:fi + nper]: a(q)
                        fi += nper
            for nh in range(2):
                if z_ == 0:
                    a(f'v_mul_f32 v{t0}, 0.5, v{D6[nh][0]}')
                    a(f'v_cndmask_b32 v{D6[nh][0]}, v{D6[nh][0]}, v{t0}, s[58:59]')
                    a(f'v_cndmask_b32 v{D6[nh][1]}, v{D6[nh][1]}, v{nyq + 2*aa + nh}, s[58:59]')
                for r in range(4):
                    a(f'v_cvt_pk_bf16_f32 v{zf[2*aa+nh]+r}, v{D6[nh][0]+r}, v{D6[nh][1]+r}')
        if z_ + 3 < 5:
            uload(z_ + 3, ring, 256 * (z_ + 3))
        if z_ == 0:
            a(f'v_lshlrev_b32 v{t0}, 31, v{vi}')
            a(f'v_or_b32 v{t0}, 0x3f803f80, v{t0}')
            for nt in range(3):
                a(f'v_cndmask_b32 v{G[nt]}, v{G[nt]}, v{t0}, s[58:59]')
        for m in range(4):
            for nt in range(3):
                d = v(accA[m][nt], 4)
                a(f'v_mfma_f32_16x16x32_bf16 {d}, {v(G[nt],4)}, {v(zf[m],4)}, {"0" if z_ == 0 else d}')
    T.mark()
    T.mark()
    a(f'''
    s_mul_i32 s5, s{sWV}, 10240
    s_add_u32 s5, s5, {PART}
    v_mul_u32_u24 v{t0}, 160, v{vi}
    v_lshl_add_u32 v{t0}, v{vg}, 4, v{t0}
    v_add_u32 v{t0}, s5, v{t0}
    ''')
    for m in range(4):
        for nt in range(2):
            a(f'ds_write_b128 v{t0}, {v(accA[m][nt],4)} offset:{16*m*160 + 64*nt}')
    a('s_mov_b32 exec_hi, 0')
    for m in range(4):
        a(f'ds_write_b128 v{t0}, {v(accA[m][2],4)} offset:{16*m*160 + 128}')
    a('s_mov_b64 exec, -1')
    hiA = V.hi
    a.label('K2_FIN')
    a.hist = []
    a('s_nop 3')
    V.release(base_mark)
    xr = [[V(2), V(2)] for _ in range(2)]
    vo = [V(), V()]; vd = [V(), V()]; va_ = [V(), V()]
    a('s_mov_b32 s8, 6554')
    a(f's_mul_i32 s5, s{sMB}, {2*1280}')
    a(f's_mul_i32 s6, s{sNB}, 80')
    a('s_add_u32 s5, s5, s6')
    for j in range(2):
        a(f'''
        v_add_u32 v{t0}, {512*j}, v0
        v_mul_u32_u24 v{t1}, s8, v{t0}
        v_lshrrev_b32 v{t1}, 16, v{t1}
        v_mul_u32_u24 v{t2}, 10, v{t1}
        v_sub_u32 v{t0}, v{t0}, v{t2}
        v_mul_u32_u24 v{vd[j]}, {PS}, v{t1}
        v_lshl_add_u32 v{vd[j]}, v{t0}, 4, v{vd[j]}
        v_mul_u32_u24 v{va_[j]}, 160, v{t1}
        v_lshl_add_u32 v{va_[j]}, v{t0}, 4, v{va_[j]}
        v_add_u32 v{va_[j]}, {PART}, v{va_[j]}
        v_and_b32 v{t2}, 31, v{t1}
        v_lshlrev_b32 v{t2}, 6, v{t2}
        v_lshrrev_b32 v{t1}, 5, v{t1}
        v_add_u32 v{t2}, v{t2}, v{t1}
        v_mul_u32_u24 v{t2}, 1280, v{t2}
        v_lshl_add_u32 v{t2}, v{t0}, 3, v{t2}
        v_add_u32 v{vo[j]}, s5, v{t2}
        ''')
        if j == 1:
            a(f'v_cmp_gt_u32 vcc, 128, v0')
            a(f'v_mov_b32 v{t0}, 0x7fffffff')
            a(f'v_cndmask_b32 v{vo[1]}, v{t0}, v{vo[1]}, vcc')
        for hh in range(2):
            a(f'buffer_load_dwordx2 {v(xr[j][hh],2)}, v{vo[j]}, s[{SX}:{SX+3}], 0 offen offset:{640*hh}{IN}')
    a('s_waitcnt lgkmcnt(0)')
    a('s_barrier')
    T.mark()
    pd = [[V(4) for _ in range(4)] for _ in range(2)]
    pa = [V(4) for _ in range(4)]
    vd2 = V()
    a('s_mov_b32 s9, 0xffff0000')
    NEG = 'neg_lo:[0,1] neg_hi:[0,1]'
    for j in range(2):
        if j == 1:
            a('s_cmp_ge_u32 s4, 2')
            a('s_cbranch_scc1 K2_DONE')
        a(f'v_add_u32 v{vd2}, {2*RING}, v{vd[j]}')
        for w in range(4):
            a(f'ds_read_b128 {v(pa[w],4)}, v{va_[j]} offset:{10240*w}')
        for hh in range(2):
            for w in range(4):
                a(f'ds_read_b128 {v(pd[hh][w],4)}, v{vd[j] if w < 2 else vd2} offset:{RING*(w%2) + 160*hh}')
        a('s_waitcnt lgkmcnt(8)')
        for r in range(4):
            a(f'v_add_f32 v{pa[0]+r}, v{pa[0]+r}, v{pa[1]+r}')
            a(f'v_add_f32 v{pa[2]+r}, v{pa[2]+r}, v{pa[3]+r}')
        for r in range(4):
            a(f'v_sub_f32 v{pa[1]+r}, v{pa[0]+r}, v{pa[2]+r}')
            a(f'v_add_f32 v{pa[0]+r}, v{pa[0]+r}, v{pa[2]+r}')
        a(f's_waitcnt vmcnt({2 if j == 0 else 2})')
        for hh in range(2):
            for r in range(4):
                src = xr[j][hh] + r // 2
                if r % 2 == 0: a(f'v_lshlrev_b32 v{pa[2]+r}, 16, v{src}')
                else: a(f'v_and_b32 v{pa[2]+r}, s9, v{src}')
            for r in range(4):
                a(f'v_add_f32 v{pa[hh]+r}, v{pa[hh]+r}, v{pa[2]+r}')
            a(f's_waitcnt lgkmcnt({4 if hh == 0 else 0})')
            for r in range(4):
                a(f'v_add_f32 v{pd[hh][0]+r}, v{pd[hh][0]+r}, v{pd[hh][1]+r}')
                a(f'v_add_f32 v{pd[hh][2]+r}, v{pd[hh][2]+r}, v{pd[hh][3]+r}')
            for r in range(4):
                a(f'v_add_f32 v{pd[hh][0]+r}, v{pd[hh][0]+r}, v{pd[hh][2]+r}')
                a(f'v_add_f32 v{pd[hh][0]+r}, v{pd[hh][0]+r}, v{pa[hh]+r}')
            a(f'v_cvt_pk_bf16_f32 v{pd[hh][1]}, v{pd[hh][0]}, v{pd[hh][0]+1}')
            a(f'v_cvt_pk_bf16_f32 v{pd[hh][1]+1}, v{pd[hh][0]+2}, v{pd[hh][0]+3}')
            a(f'buffer_store_dwordx2 {v(pd[hh][1],2)}, v{vo[j]}, s[{SO}:{SO+3}], 0 offen offset:{640*hh}{OST}')
    a.label('K2_DONE')
    T.mark()
    if T.n:
        a('s_waitcnt vmcnt(0)')
        T.mark()
        T.flush(t0, t1)
        if os.environ.get('DBGREC'):
            rec = int(os.environ['DBGREC'])
            a(f'''
            s_waitcnt vmcnt(0)
            s_cmp_eq_u32 s2, 0
            s_cbranch_scc0 K2_NODBG
            s_cmp_eq_u32 s4, 0
            s_cbranch_scc0 K2_NODBG
            s_add_u32 s64, s34, {24 << 20}
            s_addc_u32 s65, s35, 0
            s_mov_b32 s66, 0x400000
            s_mov_b32 s68, s32
            s_mov_b32 s69, s33
            s_mov_b32 s70, 64
            s_mov_b32 s71, 0x00020000
            s_mov_b32 s5, {rec}
            v_lshlrev_b32 v{t0}, 3, v0
            v_lshlrev_b32 v{t1}, 2, v0
            buffer_load_dword v{t2}, v{t0}, s[64:67], s5 offen sc1
            s_waitcnt vmcnt(0)
            buffer_store_dword v{t2}, v{t1}, s[68:71], 0 offen
            ''')
            a.label('K2_NODBG')
    a('s_endpgm')
    return max(hiD, hiA, V.hi), LDS, 512
```
